```python
import torch

def _softmax(x, axis=-1):
    return torch.softmax(x, dim=axis)
def _gelu(x):
    return torch.nn.functional.gelu(x, approximate="tanh")
def _silu(x):
    return torch.nn.functional.silu(x)
def _sigmoid(x):
    return torch.sigmoid(x)
def _layernorm(x, axis=-1, eps=1e-5):
    m = x.mean(dim=axis, keepdim=True)
    v = x.var(dim=axis, keepdim=True, unbiased=False)
    return (x - m) / torch.sqrt(v + eps)
def _scatter_add(tgt, idx, src, axis=0):
    return tgt.clone().index_add_(axis, idx, src)
def _segment_sum(src, seg, n):
    out = torch.zeros((n,) + src.shape[1:], dtype=src.dtype)
    return out.index_add_(0, seg, src)
def _pad(x, pw):
    flat = tuple(v for pair in reversed(pw) for v in pair)
    return torch.nn.functional.pad(x, flat)

kernel_name = 'concat_heads__mha_block_cached__mha_block_cached__near_ridge'

def setup_inputs():

    _w = (lambda a: (lambda t: t.to(torch.bfloat16) if t.is_floating_point() else t)(torch.as_tensor(a)))
    def _A_setup():
        B, Sq, D = 8, 224, 1024
        H, Sk, Dh = 32, 1024, 128
        return {
            "x": _w((lambda *s: torch.randn(*s, dtype=torch.bfloat16) * 0.8)(B, Sq, D)),
            "k_cache": _w((lambda *s: torch.randn(*s, dtype=torch.bfloat16) * 0.8)(B, H, Sk, Dh)),
            "v_cache": _w((lambda *s: torch.randn(*s, dtype=torch.bfloat16) * 0.05)(B, H, Sk, Dh)),
            "wq": _w((lambda *s: torch.randn(*s, dtype=torch.bfloat16) * 0.8)(D, H * Dh) * (D ** -0.5)),
            "wo": _w((lambda *s: torch.randn(*s, dtype=torch.bfloat16) * 0.05)(H * Dh, D) * ((H * Dh) ** -0.5)),
        }
    _A_in = _A_setup()

    def _B_setup():
        B, Sq, D = 8, 224, 1024
        H, Sk, Dh = 32, 1024, 128
        return {
            "x": _w((lambda *s: torch.randn(*s, dtype=torch.bfloat16) * 0.8)(B, Sq, D)),
            "k_cache": _w((lambda *s: torch.randn(*s, dtype=torch.bfloat16) * 0.8)(B, H, Sk, Dh)),
            "v_cache": _w((lambda *s: torch.randn(*s, dtype=torch.bfloat16) * 0.05)(B, H, Sk, Dh)),
            "wq": _w((lambda *s: torch.randn(*s, dtype=torch.bfloat16) * 0.8)(D, H * Dh) * (D ** -0.5)),
            "wo": _w((lambda *s: torch.randn(*s, dtype=torch.bfloat16) * 0.05)(H * Dh, D) * ((H * Dh) ** -0.5)),
        }
    _B_in = _B_setup()

    return {
        "A_x": _A_in["x"],
        "A_k_cache": _A_in["k_cache"],
        "A_v_cache": _A_in["v_cache"],
        "A_wq": _A_in["wq"],
        "A_wo": _A_in["wo"],
        "B_x": _B_in["x"],
        "B_k_cache": _B_in["k_cache"],
        "B_v_cache": _B_in["v_cache"],
        "B_wq": _B_in["wq"],
        "B_wo": _B_in["wo"],
    }

def reference(A_x, A_k_cache, A_v_cache, A_wq, A_wo, B_x, B_k_cache, B_v_cache, B_wq, B_wo):
    def _A_ref(x, k_cache, v_cache, wq, wo):
        B, Sq, D = x.shape
        H, Dh = 32, 128
        q = (lambda x, *d: x.permute(*d))((x @ wq).reshape(B, Sq, H, Dh), 0, 2, 1, 3)
        scores = torch.einsum("bhqd,bhkd->bhqk", q, k_cache) * (Dh ** -0.5)
        p = _softmax(scores, axis=-1)
        o = torch.einsum("bhqk,bhkd->bhqd", p, v_cache)
        return (lambda x, *d: x.permute(*d))(o, 0, 2, 1, 3).reshape(B, Sq, H * Dh) @ wo

    def _B_ref(x, k_cache, v_cache, wq, wo):
        B, Sq, D = x.shape
        H, Dh = 32, 128
        q = (lambda x, *d: x.permute(*d))((x @ wq).reshape(B, Sq, H, Dh), 0, 2, 1, 3)
        scores = torch.einsum("bhqd,bhkd->bhqk", q, k_cache) * (Dh ** -0.5)
        p = _softmax(scores, axis=-1)
        o = torch.einsum("bhqk,bhkd->bhqd", p, v_cache)
        return (lambda x, *d: x.permute(*d))(o, 0, 2, 1, 3).reshape(B, Sq, H * Dh) @ wo

    a = _A_ref(A_x, A_k_cache, A_v_cache, A_wq, A_wo)
    b = _B_ref(B_x, B_k_cache, B_v_cache, B_wq, B_wo)
    return torch.concatenate([a, b], axis=-1)
```

```python
STEP = 112
PAT = """
V00 V01|E00|V10 V11|E01|E02|V20 V21|E03|E04|V30 V31|E05|V40 C00|E06|V41 C01|E07|C02 C03|V50 V51
V60 V61|V70 V71|E10|M0+ E11|G00+ A00 A01|A02 A03|E12|E13|E14|G01+ A04 A05|E15|A06 A07|E16|E17 C10|C11 C12 C13|G02+ A10 A11
E20|E21|A12 A13|E22|E23|G03+ A14 A15|E24|E25|A16 A17|C20 C21|E26|M1+ E27|G10+ A20 A21|C22 C23|A22 A23|A24 A25
E30|E31|E32|E33|A26 A27|E34|E35|C30 C31|E36|E37|A30 A31|C32 C33|A32 A33|A34 A35|A36 A37|G11+
E40|E41|E42|E43|E44|E45|C40 C41|E46|E47|A40 A41|C42 C43|A42 A43|A44 A45|A46 A47|G12+|W G13+
B E50|U+ E51|Y+ E52|E53|E54|E55|C50 C51|E56|E57|K0 K1|C52 C53|K2 K3|K4 A50|K5 A51|K6 A52|K7 A53
E60|E61|E62|E63|A54 A55|E64|E65|A56 A57|C60 C61|E66|E67|A60 A61|C62 C63|A62 A63|A64 A65|A66 A67
"""
def parse(pat=PAT):
    gaps = []
    for line in pat.strip().split("\n"):
        cells = line.split("|")
        assert len(cells) == 16, (len(cells), line)
        for c in cells:
            l = []
            for tok in c.split():
                d = 0
                if tok.endswith("+"): tok = tok[:-1]; d = -1
                l.append((tok, d))
            gaps.append(l)
    assert len(gaps) == STEP
    pos = {}
    for g, l in enumerate(gaps):
        for k, d in l:
            assert k not in pos, k
            pos[k] = g - d * STEP
    for t in range(7):
        b = 16 * t
        for j in range(8):
            e = pos[f"E{t}{j}"]; assert e >= b + (0 if j < 4 else 3), (t, j)
            a = pos[f"A{t}{j}"]; assert e < a <= b + 16 + (7 if j < 4 else 11), (t, j, a)
        for c in range(4):
            x = pos[f"C{t}{c}"]; assert x > pos[f"E{t}{2*c}"] and x > pos[f"E{t}{2*c+1}"] and x <= b + 14, (t, c)
    for dt in range(8):
        for h in range(2): assert dt <= pos[f"V{dt}{h}"] <= 11 + dt
    for f in range(8): assert max(88 + f, pos['B']) <= pos[f"K{f}"] <= 99 + f
    over = 0
    for l in gaps:
        u = sum({'E': 2, 'G': 2, 'A': 1, 'C': 1, 'V': 1, 'K': 1}.get(k[0], 0) for k, _ in l)
        over += max(0, u - 2)
    return gaps, pos, over
if __name__ == "__main__":
    g, p, o = parse(); print("overflow", o, "ops", len(p))
```

```python
import re

def V(b, n=1): return [('v', b + i) for i in range(n)]
def A(b, n=1): return [('a', b + i) for i in range(n)]
def S(b, n=1): return [('s', b + i) for i in range(n)]

def rt(regs):
    k, b = regs[0]
    n = len(regs)
    for i, (kk, bb) in enumerate(regs): assert kk == k and bb == b + i, regs
    return f"{k}{b}" if n == 1 else f"{k}[{b}:{b+n-1}]"

class Ins:
    __slots__ = ('text', 'kind', 'w', 'r', 'tag', 'need', 'post_lgkm', 'post_vm', 'pre_lgkm', 'pre_vm', 'pre_nop', 'srcc', 'ab', 'cls', 'same_c')
    def __init__(self, text, kind, w=(), r=(), tag=None, need=None):
        self.text, self.kind = text, kind
        self.w, self.r = list(w), list(r)
        self.tag = tag
        self.need = need
        self.post_lgkm = self.post_vm = self.pre_lgkm = self.pre_vm = None
        self.pre_nop = 0
        self.srcc = []; self.ab = []
        self.cls = None
    def __repr__(self): return self.text

def op(x):
    if isinstance(x, list): return rt(x)
    return str(x)
def regs_of(*xs):
    out = []
    for x in xs:
        if isinstance(x, list): out += x
        elif x in ('vcc', 'm0', 'exec', 'scc'): out.append((x, 0))
    return out

def mfma(d, a, b, c):
    i = Ins(f"v_mfma_f32_16x16x32_bf16 {rt(d)}, {rt(a)}, {rt(b)}, {op(c)}", 'mfma', w=d, r=a + b + regs_of(c))
    i.srcc = regs_of(c); i.ab = a + b
    return i
def valu(name, d, *srcs, extra="", kind='valu', w2=(), r2=()):
    t = f"{name} {op(d)}" + "".join(f", {op(s)}" for s in srcs) + (" " + extra if extra else "")
    return Ins(t, kind, w=regs_of(d) + list(w2), r=regs_of(*srcs) + list(r2))
def trans(name, d, s): return valu(name, d, s, kind='trans')
def perm(name, x, y):
    return Ins(f"{name} {rt(x)}, {rt(y)}", 'perm', w=x + y, r=x + y)
def salu(name, d, *srcs, scc=True):
    t = f"{name} {op(d)}" + "".join(f", {op(s)}" for s in srcs)
    w = regs_of(d) + ([('scc', 0)] if scc else [])
    return Ins(t, 'salu', w=w, r=regs_of(*srcs))
def smov(d, s): return salu("s_mov_b32", d, s, scc=False)
def scmp(name, a, b): return Ins(f"{name} {op(a)}, {op(b)}", 'salu', w=[('scc', 0)], r=regs_of(a, b))
def br(name, label): return Ins(f"{name} {label}", 'br', r=[('scc', 0)] if 'scc' in name else [])
def label(n): return Ins(f"{n}:", 'label')
def raw(t, kind='raw', w=(), r=()): return Ins(t, kind, w=w, r=r)
def nop(n): return Ins(f"s_nop {n}", 'nop')
def bar(): return Ins("s_barrier", 'bar')
def waitvm(*need): return Ins("; waitvm", 'waitvm', need=list(need))
def waitall(): return Ins("s_waitcnt vmcnt(0) lgkmcnt(0)", 'waitall')
def waitlgkm0(): return Ins("s_waitcnt lgkmcnt(0)", 'waitlgkm0')
def dsr(name, d, addr, off):
    assert 0 <= off < 65536, off
    return Ins(f"{name} {rt(d)}, {rt(addr)}" + (f" offset:{off}" if off else ""), 'dsr', w=d, r=addr)
def dsw(name, addr, data, off):
    assert 0 <= off < 65536, off
    return Ins(f"{name} {rt(addr)}, {rt(data)}" + (f" offset:{off}" if off else ""), 'dsw', r=addr + data)
def dma(voff, srd, soff, off, flags="", tag=None):
    assert 0 <= off < 4096
    t = f"buffer_load_dwordx4 {rt(voff)}, {rt(srd)}, {op(soff)} offen" + (f" offset:{off}" if off else "") + (" " + flags if flags else "") + " lds"
    return Ins(t, 'dma', r=voff + srd + regs_of(soff) + [('m0', 0)], tag=tag)
def vld(name, d, voff, srd, soff, off, flags="", tag=None):
    assert 0 <= off < 4096
    t = f"{name} {rt(d)}, {rt(voff)}, {rt(srd)}, {op(soff)} offen" + (f" offset:{off}" if off else "") + (" " + flags if flags else "")
    return Ins(t, 'vld', w=d, r=voff + srd + regs_of(soff), tag=tag)
def vst(name, data, voff, srd, soff, off, flags="", tag=None):
    assert 0 <= off < 4096
    t = f"{name} {rt(data)}, {rt(voff)}, {rt(srd)}, {op(soff)} offen" + (f" offset:{off}" if off else "") + (" " + flags if flags else "")
    i = Ins(t, 'vst', r=data + voff + srd + regs_of(soff), tag=tag)
    i.ab = data
    return i

VM = ('dma', 'vld', 'vst')
LG = ('dsr', 'dsw')
VALU = ('valu', 'trans', 'perm')

class Program:
    def __init__(self):
        self.blocks = {}
        self.order = []
    def block(self, name):
        b = []
        self.blocks[name] = b; self.order.append(name)
        return b

    def insert_waits(self, trace):
        lg = []
        vm = []
        for bname, env in trace:
            blk = self.blocks[bname]
            last_mfma = None; lg_since = 0; vm_since = 0; prev_is_mfma = False
            for ins in blk:
                if ins.pre_lgkm is not None: del lg[:max(0, len(lg) - ins.pre_lgkm)]
                if ins.pre_vm is not None: del vm[:max(0, len(vm) - ins.pre_vm)]
                k = ins.kind
                if k == 'waitall': lg.clear(); vm.clear()
                elif k == 'waitlgkm0': lg.clear()
                elif k == 'thr': del vm[:max(0, len(vm) - ins.tag)]
                touched = set(ins.r) | set(ins.w)
                need_lg = need_vm = None
                if k == 'waitvm':
                    tags = {(nd[0], nd[1] + env.get(nd[2] if len(nd) > 2 else nd[0], 0)) for nd in ins.need}
                    for j in range(len(vm) - 1, -1, -1):
                        if vm[j][1] in tags:
                            need_vm = len(vm) - 1 - j; break
                elif touched:
                    for j in range(len(lg) - 1, -1, -1):
                        if lg[j] & touched:
                            need_lg = len(lg) - 1 - j; break
                    for j in range(len(vm) - 1, -1, -1):
                        if vm[j][0] & touched:
                            need_vm = len(vm) - 1 - j; break
                if need_lg is not None:
                    n = min(need_lg, 15)
                    if last_mfma is not None and k == 'mfma' and need_lg >= lg_since:
                        m = min(need_lg - lg_since, 15)
                        last_mfma.post_lgkm = m if last_mfma.post_lgkm is None else min(m, last_mfma.post_lgkm)
                        del lg[:max(0, len(lg) - lg_since - m)]
                    else:
                        ins.pre_lgkm = n if ins.pre_lgkm is None else min(n, ins.pre_lgkm)
                        del lg[:max(0, len(lg) - n)]
                if need_vm is not None:
                    n = min(need_vm, 63)
                    if last_mfma is not None and k == 'mfma' and need_vm >= vm_since:
                        m = min(need_vm - vm_since, 63)
                        last_mfma.post_vm = m if last_mfma.post_vm is None else min(m, last_mfma.post_vm)
                        del vm[:max(0, len(vm) - vm_since - m)]
                    else:
                        ins.pre_vm = n if ins.pre_vm is None else min(n, ins.pre_vm)
                        del vm[:max(0, len(vm) - n)]
                if k in LG:
                    lg.append(set(ins.w)); lg_since += 1
                elif k in VM:
                    tag = None if ins.tag is None else (ins.tag[0], ins.tag[1] + env.get(ins.tag[0], 0))
                    vm.append((set(ins.w), tag)); vm_since += 1
                    assert len(vm) <= 63 + 0 or True
                if k == 'mfma':
                    last_mfma = ins; lg_since = 0; vm_since = 0
                    if ins.post_lgkm is not None: del lg[:max(0, len(lg) - ins.post_lgkm)]
                    if ins.post_vm is not None: del vm[:max(0, len(vm) - ins.post_vm)]
                if k in ('bar', 'label', 'br'):
                    last_mfma = None
        return len(lg), len(vm)

    @staticmethod
    def wtext(lgk, vmc):
        p = []
        if vmc is not None: p.append(f"vmcnt({vmc})")
        if lgk is not None: p.append(f"lgkmcnt({lgk})")
        return "s_waitcnt " + " ".join(p)

    def expand(self, ins):
        out = []
        if ins.pre_lgkm is not None or ins.pre_vm is not None:
            out.append((self.wtext(ins.pre_lgkm, ins.pre_vm), 1, None))
        n = ins.pre_nop
        while n > 0:
            m = min(n, 16); out.append((f"s_nop {m-1}", m, None)); n -= m
        if ins.kind == 'waitvm': pass
        elif ins.kind == 'label': out.append((ins.text, 0, ins))
        elif ins.kind == 'nop': out.append((ins.text, int(ins.text.split()[1]) + 1, ins))
        else: out.append((ins.text, 1, ins))
        if ins.post_lgkm is not None or ins.post_vm is not None:
            out.append((self.wtext(ins.post_lgkm, ins.post_vm), 1, None))
        return out

    def fix_hazards(self, trace, verbose=False):
        total = 0
        for it in range(20):
            n = self._hazard_pass(trace, verbose)
            total += n
            if n == 0: return total
        raise RuntimeError("hazards do not converge")

    def _hazard_pass(self, trace, verbose):
        pos = 0
        last = {}
        added = 0
        def need(ins, ev, regs, dist, why):
            nonlocal added, pos
            worst = 0
            for r in regs:
                p = last.get((ev, r))
                if p is not None:
                    gap = pos - p - 1
                    if gap < dist: worst = max(worst, dist - gap)
            if worst:
                ins.pre_nop += worst; added += worst; pos += worst
                if verbose: print(f"  hazard {why}: +{worst} before {ins.text}")
        for bname, env in trace:
            for ins in self.blocks[bname]:
                ex = self.expand(ins)
                idx = next((j for j, e in enumerate(ex) if e[2] is ins), None)
                if idx is None:
                    pos += sum(e[1] for e in ex); continue
                pos += sum(e[1] for e in ex[:idx])
                k = ins.kind
                vr = [r for r in ins.r if r[0] in 'va']; vw = [r for r in ins.w if r[0] in 'va']
                sr = [r for r in ins.r if r[0] == 's' or r[0] == 'vcc']
                if k == 'mfma':
                    need(ins, 'valu_w', vr, 2, "valu->mfma")
                    need(ins, 'mfma_w', ins.ab, 8, "mfma D->A/B")
                    if ins.srcc:
                        key = last.get(('mfma_d', tuple(ins.srcc)))
                        fresh = max((last.get(('mfma_w', r), -10**9) for r in ins.srcc))
                        if key is None or key != fresh:
                            need(ins, 'mfma_w', ins.srcc, 6, "mfma D->C overlap")
                    if tuple(ins.srcc) != tuple(ins.w):
                        need(ins, 'mfma_w', ins.w, 6, "mfma WAW")
                    need(ins, 'exec_w', [('exec', 0)], 4, "exec->mfma")
                elif k in VALU:
                    need(ins, 'mfma_w', vr + vw, 8, "mfma D->valu")
                    need(ins, 'mfma_c', vw, 3, "mfma C WAR")
                    if k != 'trans': need(ins, 'trans_w', vr, 1, "trans->valu")
                    if k == 'perm' or 'dpp' in ins.text: need(ins, 'valu_w', vr, 2, "valu->perm")
                    if 'readfirstlane' in ins.text or 'readlane' in ins.text: need(ins, 'valu_w', vr, 1, "valu->readlane")
                    need(ins, 'valu_sw', sr, 2, "valu sgpr->valu")
                    need(ins, 'st_data', vw, 2, "store data WAR")
                elif k in VM or k in LG:
                    need(ins, 'mfma_w', vr + vw, 8, "mfma D->mem")
                    need(ins, 'valu_sw', sr, 5, "valu sgpr->vmem")
                    if k == 'dma': need(ins, 'm0_w', [('m0', 0)], 1, "m0->dma")
                    if k in ('vld', 'dsr'): need(ins, 'st_data', vw, 1, "store data WAR")
                    if 'addtid' in ins.text: need(ins, 'm0_w', [('m0', 0)], 1, "m0->addtid")
                elif k in ('salu', 'br'):
                    need(ins, 'valu_sw', sr + ([('vcc', 0)] if 'vcc' in ins.text else []), 2, "valu sgpr->salu (pad)")
                if k == 'mfma':
                    for r in ins.w: last[('mfma_w', r)] = pos
                    last[('mfma_d', tuple(ins.w))] = pos
                    for r in ins.srcc: last[('mfma_c', r)] = pos
                if k in VALU:
                    for r in vw:
                        last[('valu_w', r)] = pos
                        if k == 'trans': last[('trans_w', r)] = pos
                        else: last.pop(('trans_w', r), None)
                    for r in ins.w:
                        if r[0] == 's' or r[0] == 'vcc': last[('valu_sw', r)] = pos
                        if r[0] == 'exec': last[('exec_w', r)] = pos
                if k == 'salu':
                    for r in ins.w:
                        if r[0] == 'm0': last[('m0_w', r)] = pos
                        last.pop(('valu_sw', r), None)
                if k == 'vst' and len(ins.ab) >= 3:
                    for r in ins.ab: last[('st_data', r)] = pos
                pos += sum(e[1] for e in ex[idx:])
        return added

    def text(self):
        out = []
        for name in self.order:
            for ins in self.blocks[name]:
                for t, _, i in self.expand(ins):
                    out.append(t if (i is not None and i.kind == 'label') else "    " + t)
        return "\n".join(out) + "\n"

class Op:
    __slots__ = ('key', 'cls', 'lo', 'hi', 'after', 'gap')
    def __init__(self, key, cls, lo, hi, after=()):
        self.key, self.cls, self.lo, self.hi = key, cls, lo, hi
        self.after = list(after)
        self.gap = None

def schedule(ops, g0, g1, fixed=None):
    res = {}
    todo = list(ops)
    for g in range(g0, g1):
        ready = [o for o in todo if o.lo <= g and all(p.gap is not None and p.gap + d <= g for p, d in o.after)]
        ready.sort(key=lambda o: (o.hi, o.lo))
        pick = []
        s = [o for o in ready if o.cls == 'S']
        if s: pick.append(s[0])
        rest = [o for o in ready if o.cls != 'S']
        units = 0
        body = []
        for o in rest:
            u = 2 if o.cls in 'EG' else 1
            if units + u <= 2:
                if o.cls == 'E' and units: continue
                if o.cls == 'G' and units: continue
                body.append(o); units += u
            if units >= 2: break
        for o in ready:
            if o not in pick and o not in body and o.hi <= g: body.append(o)
        order = {'S': 0, 'G': 1, 'L': 2, 'E': 3, 'P': 4}
        body.sort(key=lambda o: order[o.cls])
        pick += body
        for o in pick:
            o.gap = g; todo.remove(o)
        res[g] = pick
    return res, todo
```

```python
from core import *
import atpat, struct

def f2u(x): return struct.unpack("<I", struct.pack("<f", x))[0]
RING = lambda r: r * 40960
CFG = dict(kv_flags="nt", x_flags="", w_flags="", o_flags="", stamps=False)

SRD_X, SRD_W, SRD_K, SRD_V, SRD_O = S(4, 4), S(8, 4), S(12, 4), S(16, 4), S(20, 4)
sWAVE, sHH, sRHO = S(24), S(25), S(26)
sX, sW, sKV = S(27), S(28), S(29)
sMX, sMW, sMK, sMV = S(30), S(31), S(32), S(33)
sCNT, sPASS = S(34), S(35)
sSCALE = S(60, 2)
sT = [S(62 + i) for i in range(10)]
M0 = 'm0'
vWA = [V(1 + i) for i in range(8)]
vXA = [V(9), V(10)]
vKD = [V(13), V(14)]; vVD = [V(15), V(16)]
vXD = [V(17 + i) for i in range(7)]
vWD = [V(24 + i) for i in range(4)]
vT = [V(28 + i) for i in range(4)]
ACC = lambda dt, qt: V(32 + (qt * 8 + dt) * 4, 4)
QA = lambda dt: A(176 + 4 * dt, 4)
QB = lambda buf, qt: A((208 if buf == 0 else 0) + 4 * qt, 4)
vKA = [V(1 + i) for i in range(4)]
vVA = [V(5 + i) for i in range(8)]
vL = [V(17 + i) for i in range(7)]
PB = lambda buf: V(24 + 4 * buf, 4)
SB = lambda buf: V(32 + 8 * buf, 8)
NEGM = lambda t: V(48 + 4 * t, 4)
def OT(t, dt): return V(96 + 32 * t + 4 * dt, 4) if t < 5 else A(32 * (t - 5) + 4 * dt, 4)
QF = lambda t, ds: A(64 + 16 * t + 4 * ds, 4)
KF = lambda f: A(176 + 4 * f, 4)
VF = lambda dt: A(208 + 4 * dt, 4)

def vop(name, d, *s, **k): return valu(name, d, *s, **k)

def srd(b, dst, ptr, off_lo, size):
    b.append(salu("s_add_u32", [dst[0]], [ptr[0]], off_lo))
    b.append(Ins(f"s_addc_u32 {rt([dst[1]])}, {rt([ptr[1]])}, 0", 'salu', w=[dst[1], ('scc', 0)], r=[ptr[1], ('scc', 0)]))
    b.append(smov([dst[2]], size))
    b.append(smov([dst[3]], "0x20000"))

def stamp(b, n):
    if CFG['stamps']:
        b.append(raw(f"s_memrealtime s[{80+2*n}:{81+2*n}]", 'raw'))

def prologue(p, name):
    b = p.block("k1_pro")
    P = lambda i: S(36 + 2 * i, 2)
    b += [scmp("s_cmp_ge_u32", S(2), 256), br("s_cbranch_scc1", f"L_{name}_end")]
    stamp(b, 0)
    b += [raw("s_load_dwordx16 s[36:51], s[0:1], 0", w=S(36, 16)), raw("s_load_dwordx4 s[52:55], s[0:1], 64", w=S(52, 4)),
          raw("s_load_dwordx2 s[58:59], s[0:1], 96", w=S(58, 2))]
    lane, i16, g, r_, c_ = V(28), V(29), V(30), V(31), V(11)
    b += [vop("v_lshrrev_b32", V(12), 6, V(0)), vop("v_and_b32", lane, 63, V(0)),
          vop("v_readfirstlane_b32", sWAVE, V(12)),
          vop("v_and_b32", i16, 15, lane), vop("v_lshrrev_b32", g, 4, lane)]
    b += [salu("s_lshr_b32", sHH, sWAVE, 1), salu("s_and_b32", sRHO, sWAVE, 1)]
    x_, j_, blk, bb, hp = sT[0], sT[1], sT[2], sT[3], sT[4]
    b += [salu("s_and_b32", x_, S(2), 7), salu("s_lshr_b32", j_, S(2), 3), salu("s_lshr_b32", blk, x_, 2),
          salu("s_and_b32", bb, x_, 1), salu("s_lshl_b32", bb, bb, 2), salu("s_and_b32", sT[5], j_, 3), salu("s_add_u32", bb, bb, sT[5]),
          salu("s_bfe_u32", hp, x_, "0x10001"), salu("s_lshl_b32", hp, hp, 3), salu("s_lshr_b32", sT[5], j_, 2), salu("s_add_u32", hp, hp, sT[5])]
    t0, t1, t2, t3 = sT[5], sT[6], sT[7], sT[8]
    b += [salu("s_mul_i32", t0, sHH, 40960, scc=False),
          salu("s_lshl_b32", t1, sRHO, 12),
          salu("s_add_u32", sMK, t0, t1), salu("s_add_u32", sMV, sMK, RING(2)), salu("s_add_u32", sMW, sMV, 8192),
          salu("s_mul_i32", t2, sRHO, 7168, scc=False), salu("s_add_u32", sMX, t0, t2), salu("s_add_u32", sMX, sMX, 8192)]
    tmp, tmp2 = V(12), V(1)
    b += [vop("v_lshrrev_b32", tmp, 3, lane)]
    b += [salu("s_mul_i32", t2, sHH, 112, scc=False), salu("s_mul_i32", t3, sRHO, 56, scc=False), salu("s_add_u32", t2, t2, t3)]
    b += [vop("v_add_u32", tmp, t2, tmp), vop("v_lshlrev_b32", tmp, 11, tmp)]
    b += [vop("v_and_b32", tmp2, 7, lane), vop("v_xor_b32", tmp2, tmp2, g)]
    b += [salu("s_lshl_b32", t3, sRHO, 2)]
    b += [vop("v_xor_b32", tmp2, t3, tmp2), vop("v_lshlrev_b32", V(2), 4, tmp2), vop("v_xor_b32", V(3), 64, V(2))]
    for pp in range(7):
        imm = (pp & 3) * 1024
        b += [vop("v_add_u32", vXD[pp], tmp, V(2) if pp % 2 == 0 else V(3)), vop("v_add_u32", vXD[pp], pp * 16384 - imm, vXD[pp])]
    b += [salu("s_lshl_b32", t3, sRHO, 4), vop("v_add_u32", tmp, t3, g), vop("v_lshlrev_b32", tmp, 13, tmp),
          salu("s_lshl_b32", t3, sHH, 8), vop("v_add_u32", tmp, t3, tmp),
          vop("v_lshlrev_b32", tmp2, 1, g), vop("v_xor_b32", tmp2, tmp2, i16), vop("v_lshlrev_b32", V(2), 4, tmp2), vop("v_xor_b32", V(3), 128, V(2))]
    for pp in range(4):
        b += [vop("v_add_u32", vWD[pp], tmp, V(2) if pp < 2 else V(3)), vop("v_add_u32", vWD[pp], pp * 32768 - pp * 1024, vWD[pp])]
    b += [vop("v_lshlrev_b32", tmp, 8, g), vop("v_add_u32", tmp, t1, tmp), vop("v_add_u32", vVD[0], tmp, V(2)), vop("v_add_u32", vVD[1], tmp, V(3))]
    b += [vop("v_and_b32", tmp2, 2, g), vop("v_lshlrev_b32", tmp2, 1, tmp2), vop("v_and_b32", V(2), 1, g), vop("v_or_b32", tmp2, tmp2, V(2)),
          vop("v_xor_b32", tmp2, tmp2, i16), vop("v_lshlrev_b32", V(2), 4, tmp2), vop("v_xor_b32", V(3), 128, V(2)),
          vop("v_add_u32", vKD[0], tmp, V(2)), vop("v_add_u32", vKD[1], tmp, V(3))]
    b.append(waitlgkm0())
    b.append(scmp("s_cmp_eq_u32", blk, 0))
    for i in range(4):
        for hl in range(2):
            b.append(Ins(f"s_cselect_b32 s{36+2*i+hl}, s{36+2*i+hl}, s{46+2*i+hl}", 'salu', w=S(36+2*i+hl), r=S(36+2*i+hl)+S(46+2*i+hl)+[('scc',0)]))
    b += [salu("s_mul_i32", t0, bb, 458752, scc=False)]; srd(b, SRD_X, P(0), t0, 458752)
    b += [salu("s_lshl_b32", t0, hp, 9), salu("s_sub_u32", t2, 8388608, t0)]; srd(b, SRD_W, P(3), t0, t2)
    b += [smov(sX, 0), smov(sW, 0), smov(sKV, 0)]
    def ldx(pair):
        for pp in range(7):
            if pp % 4 == 0: b.append(salu("s_add_u32", M0, sMX, (pair & 1) * 18432 + (pp >> 2) * 4096))
            b.append(dma(vXD[pp], SRD_X, sX, (pp & 3) * 1024, CFG['x_flags'], tag=('X', pair)))
        b.append(salu("s_add_u32", sX, sX, 128))
    def ldw(ks):
        b.append(salu("s_add_u32", M0, sMW, (ks & 3) * 8192))
        for pp in range(4): b.append(dma(vWD[pp], SRD_W, sW, pp * 1024, CFG['w_flags'], tag=('W', ks)))
        b.append(salu("s_add_u32", sW, sW, 262144))
    ldx(0); ldw(0); ldw(1); ldx(1); ldw(2); ldw(3)
    b += [salu("s_lshl_b32", t0, bb, 5), salu("s_lshl_b32", t2, hp, 1), salu("s_add_u32", t0, t0, t2), salu("s_add_u32", t0, t0, sHH),
          salu("s_lshl_b32", t0, t0, 18)]
    srd(b, SRD_K, P(1), t0, 262144); srd(b, SRD_V, P(2), t0, 262144)
    b += [salu("s_lshl_b32", t0, blk, 3), salu("s_add_u32", t0, t0, bb), salu("s_lshl_b32", t0, t0, 1), salu("s_add_u32", t0, t0, sRHO), salu("s_lshl_b32", t0, t0, 5),
          salu("s_lshl_b32", t2, hp, 1), salu("s_add_u32", t0, t0, t2), salu("s_add_u32", t0, t0, sHH), salu("s_mul_i32", t0, t0, 28672, scc=False)]
    srd(b, SRD_O, S(58, 2), t0, 28672)
    b += [smov(sPASS, 0), smov([sSCALE[0]], hex(f2u(1.4426950408889634 / 128 ** 0.5))), smov([sSCALE[1]], 0)]
    b += [vop("v_lshrrev_b32", tmp, 1, i16), vop("v_xor_b32", tmp, tmp, g), vop("v_lshlrev_b32", tmp, 4, tmp), vop("v_lshlrev_b32", tmp2, 7, i16),
          salu("s_mul_i32", t0, sRHO, 40960, scc=False), salu("s_add_u32", t0, t0, 8192),
          vop("v_add_u32", tmp2, t0, tmp2), vop("v_add_u32", vXA[0], tmp2, tmp), vop("v_xor_b32", tmp, 64, tmp), vop("v_add_u32", vXA[1], tmp2, tmp)]
    b += [vop("v_bfe_u32", r_, lane, 2, 2), vop("v_and_b32", c_, 3, lane),
          salu("s_mul_i32", t0, sHH, 40960, scc=False), salu("s_add_u32", t0, t0, RING(2) + 8192),
          vop("v_lshl_add_u32", tmp, g, 3, r_), vop("v_lshlrev_b32", tmp, 8, tmp), vop("v_lshl_add_u32", tmp, c_, 3, tmp), vop("v_add_u32", tmp, t0, tmp),
          vop("v_and_b32", g, 1, g), vop("v_lshl_add_u32", g, g, 2, r_), vop("v_lshlrev_b32", g, 5, g)]
    for dt in range(8):
        b += [vop("v_xor_b32", vWA[dt], dt * 32, g), vop("v_add_u32", vWA[dt], tmp, vWA[dt])]
    for r in range(32, 256): b.append(vop("v_mov_b32", V(r), 0))
    b += [waitvm(('X', 0), ('W', 0)), bar()]
    for dt in range(8):
        for h in range(2): b.append(dsr("ds_read_b64_tr_b16", QA(dt)[2*h:2*h+2], vWA[dt], h * 1024))
    for qt in range(7): b.append(dsr("ds_read_b128", QB(0, qt), vXA[0], qt * 2048))
    b.append(smov(sCNT, 6))
    stamp(b, 1)

def kv_load_ops(tile, tagoff):
    o = []
    for half, (sM, srd_, vd) in enumerate(((sMK, SRD_K, vKD), (sMV, SRD_V, vVD))):
        o.append(('S', salu("s_add_u32", M0, sM, (tile & 3) * 8192)))
        for pp in range(4): o.append(('G', dma(vd[pp & 1], srd_, sKV, pp * 1024, CFG['kv_flags'], tag=('KV', tagoff))))
    o.append(('S', salu("s_add_u32", sKV, sKV, 8192)))
    return o

def qp_step(b, s, srel, last_w, last_x, kv=()):
    gaps = [[] for _ in range(56)]
    nxt = s + 1 <= 31
    if nxt:
        w = waitvm(('W', srel + 1))
        if (s + 1) % 2 == 0: w.need.append(('X', (srel + 1) // 2))
        gaps[5] += [w, waitlgkm0()]
        gaps[6].append(bar())
        for dt in range(8):
            for h in range(2): gaps[7 * dt + 6].append(dsr("ds_read_b64_tr_b16", QA(dt)[2*h:2*h+2], vWA[dt], ((s + 1) & 3) * 8192 + h * 1024))
        pair, par = (s + 1) >> 1, (s + 1) & 1
        for qt, g in enumerate((7, 8, 9, 10, 11, 12, 14)):
            gaps[g].append(dsr("ds_read_b128", QB((s + 1) & 1, qt), vXA[par], (pair & 1) * 18432 + qt * 2048))
    elif kv:
        gaps[5].append(waitlgkm0()); gaps[6].append(bar())
    seq = []
    if s % 2 == 1 and (s + 3) // 2 <= last_x:
        pair = (s + 3) // 2
        for pp in range(7):
            if pp % 4 == 0: seq.append(('S', salu("s_add_u32", M0, sMX, (pair & 1) * 18432 + (pp >> 2) * 4096)))
            seq.append(('G', dma(vXD[pp], SRD_X, sX, (pp & 3) * 1024, CFG['x_flags'], tag=('X', (srel + 3) // 2))))
        seq.append(('S', salu("s_add_u32", sX, sX, 128)))
    if s + 4 <= last_w:
        seq.append(('S', salu("s_add_u32", M0, sMW, (s & 3) * 8192)))
        for pp in range(4): seq.append(('G', dma(vWD[pp], SRD_W, sW, pp * 1024, CFG['w_flags'], tag=('W', srel + 4))))
        seq.append(('S', salu("s_add_u32", sW, sW, 262144)))
    for t in kv: seq += kv_load_ops(t, t)
    free = [g for g in range(15, 56) if g % 7 != 6]
    ng = sum(c == 'G' for c, _ in seq)
    stride = max(1, min(3, (len(free) - 1) // max(1, ng)))
    gpos = [free[min(n * stride, len(free) - 1)] for n in range(ng)]
    assert len(set(gpos)) == ng
    n = 0
    for c, ins in seq:
        if c == 'G':
            gaps[gpos[n]].append(ins); n += 1
        else:
            prev = gpos[n - 1] if n else 13
            nxt_ = gpos[n] if n < ng else 56
            if prev + 1 < nxt_: gaps[nxt_ - 1 if nxt_ < 56 else prev + 1].insert(0, ins)
            else: gaps[prev].append(ins)
    for j in range(56):
        dt, qt = divmod(j, 7)
        b.append(mfma(ACC(dt, qt), QA(dt), QB(s & 1, qt), ACC(dt, qt)))
        b += gaps[j]

def qproj(p, name):
    b = p.block("k1_qp_loop")
    b.append(label(f"L_{name}_qp"))
    for s in range(4): qp_step(b, s, s, 31, 15)
    b += [salu("s_sub_u32", sCNT, sCNT, 1), scmp("s_cmp_lg_u32", sCNT, 0), br("s_cbranch_scc1", f"L_{name}_qp")]
    b = p.block("k1_qp_tail")
    kvs = {24: (0,), 29: (1, 2), 31: (3,)}
    for s in range(24, 32): qp_step(b, s, s, 31, 15, kv=kvs.get(s, ()))
    stamp(b, 2)
    for qt in range(7):
        units = []
        for ds in range(4):
            t0, t1 = ACC(2 * ds, qt), ACC(2 * ds + 1, qt)
            units.append((t0, t1))
        for t0, t1 in units:
            for t in (t0, t1):
                b += [vop("v_pk_mul_f32", t[0:2], t[0:2], sSCALE, extra="op_sel_hi:[1,0]"), vop("v_pk_mul_f32", t[2:4], t[2:4], sSCALE, extra="op_sel_hi:[1,0]")]
        for t0, t1 in units:
            for t in (t0, t1):
                b += [vop("v_cvt_pk_bf16_f32", t[0:1], t[0:1], t[1:2]), vop("v_cvt_pk_bf16_f32", t[1:2], t[2:3], t[3:4])]
        for t0, t1 in units:
            b += [perm("v_permlane16_swap_b32", t0[0:1], t1[0:1]), perm("v_permlane16_swap_b32", t0[1:2], t1[1:2])]
        for ds, (t0, t1) in enumerate(units):
            q = QF(qt, ds)
            for n, src in enumerate((t0[0:1], t0[1:2], t1[0:1], t1[1:2])): b.append(vop("v_accvgpr_write_b32", q[n:n+1], src))
    lane, i16, g, r_, c_, tmp, tmp2 = V(28), V(29), V(30), V(31), V(32), V(33), V(34)
    t0 = sT[0]
    b += [vop("v_and_b32", lane, 63, V(0)), vop("v_and_b32", i16, 15, lane), vop("v_lshrrev_b32", g, 4, lane),
          vop("v_and_b32", tmp, 1, g), vop("v_lshlrev_b32", tmp, 1, tmp), vop("v_lshrrev_b32", tmp2, 1, g), vop("v_or_b32", tmp, tmp, tmp2),
          vop("v_and_b32", tmp2, 1, i16), vop("v_xor_b32", tmp, tmp, tmp2), vop("v_and_b32", tmp2, 6, i16), vop("v_lshlrev_b32", tmp2, 1, tmp2),
          vop("v_xor_b32", tmp, tmp, tmp2), vop("v_lshlrev_b32", tmp, 4, tmp),
          salu("s_mul_i32", t0, sHH, 40960, scc=False), vop("v_lshlrev_b32", tmp2, 8, i16), vop("v_add_u32", tmp2, t0, tmp2)]
    for ds in range(4): b += [vop("v_xor_b32", vKA[ds], ds * 64, tmp), vop("v_add_u32", vKA[ds], tmp2, vKA[ds])]
    b += [vop("v_bfe_u32", r_, lane, 2, 2), vop("v_and_b32", c_, 3, lane), salu("s_add_u32", t0, t0, RING(2)),
          vop("v_lshl_add_u32", tmp, g, 2, r_), vop("v_lshlrev_b32", tmp, 8, tmp), vop("v_lshl_add_u32", tmp, c_, 3, tmp), vop("v_add_u32", tmp, t0, tmp),
          vop("v_and_b32", g, 1, g), vop("v_lshl_add_u32", g, g, 2, r_), vop("v_lshlrev_b32", g, 5, g)]
    for dt in range(8): b += [vop("v_xor_b32", vVA[dt], dt * 32, g), vop("v_add_u32", vVA[dt], tmp, vVA[dt])]
    for t in range(7):
        for r in NEGM(t): b.append(vop("v_mov_b32", [r], 0))

def at_ins(key, i):
    k = key[0]
    if not 0 <= i <= 31: return None
    if k in 'ECA':
        t = int(key[1]); j = int(key[2]); n = 7 * i + t
        s = SB(n & 1)
        if k == 'E': return [trans("v_exp_f32", s[j:j+1], s[j:j+1])]
        if k == 'A': return [vop("v_add_f32", vL[t], vL[t], s[j:j+1])]
        return [vop("v_cvt_pk_bf16_f32", PB(n & 1)[j:j+1], s[2*j:2*j+1], s[2*j+1:2*j+2])]
    if k == 'V':
        dt, h = int(key[1]), int(key[2])
        return [dsr("ds_read_b64_tr_b16", VF(dt)[2*h:2*h+2], vVA[dt], (i & 3) * 8192 + h * 4096)]
    if k == 'K':
        if i + 1 > 31: return None
        f = int(key[1])
        return [dsr("ds_read_b128", KF(f), vKA[f & 3], ((i + 1) & 3) * 8192 + (f >> 2) * 4096)]
    if k == 'W': return None if i + 1 > 31 else [waitvm(('KV', i + 1))]
    if k == 'B': return None if i + 1 > 31 else [bar()]
    if i + 4 > 31: return None
    if k == 'M': return [salu("s_add_u32", M0, (sMK, sMV)[int(key[1])], (i & 3) * 8192)]
    if k == 'G':
        half, pp = int(key[1]), int(key[2])
        return [dma((vKD, vVD)[half][pp & 1], (SRD_K, SRD_V)[half], sKV, pp * 1024, CFG['kv_flags'], tag=('KV', i + 4))]
    if k == 'U': return [salu("s_add_u32", sKV, sKV, 8192)]
    raise KeyError(key)

def at_mfma(G):
    n, j = divmod(G, 16)
    if j < 8:
        m = n - 1
        if not 0 <= m < 224: return None
        i, t = divmod(m, 7)
        return mfma(OT(t, j), VF(j), PB(m & 1), 0 if i == 0 else OT(t, j))
    m = n + 1
    if not 0 <= m < 224: return None
    i, t = divmod(m, 7)
    kt, ds = divmod(j - 8, 4)
    d = SB(m & 1)[4*kt:4*kt+4]
    return mfma(d, KF(j - 8), QF(t, ds), NEGM(t) if ds == 0 else d)

def at_range(b, g0, g1, base_step, pat):
    for G in range(g0, g1):
        m = at_mfma(G)
        if m is not None: b.append(m)
        i, rel = divmod(G, atpat.STEP)
        for key, d in pat[rel]:
            ins = at_ins(key, i + d)
            if ins is None: continue
            for x in ins:
                if x.tag: x.tag = (x.tag[0], x.tag[1] - base_step)
                if x.need: x.need = [(n, o - base_step) for n, o in x.need]
                b.append(x)

def attention(p, name):
    pat, pos, over = atpat.parse()
    b = p.block("k1_at_entry")
    b.append(label(f"L_{name}_at"))
    for t in range(7): b.append(vop("v_mov_b32", vL[t], 0))
    b += [waitvm(('KV', 0)), bar()]
    for f in range(8): b.append(dsr("ds_read_b128", KF(f), vKA[f & 3], (f >> 2) * 4096))
    b.append(smov(sCNT, 7))
    stamp(b, 3)
    at_range(b, -8, 120, 0, pat)
    b = p.block("k1_at_loop")
    b.append(label(f"L_{name}_atl"))
    at_range(b, 120, 120 + 448, 0, pat)
    b += [salu("s_sub_u32", sCNT, sCNT, 1), scmp("s_cmp_lg_u32", sCNT, 0), br("s_cbranch_scc1", f"L_{name}_atl")]
    b = p.block("k1_at_tail")
    at_range(b, 120 + 448 * 7, 32 * 112 + 8, 0, pat)
    stamp(b, 4)

def lane_reduce(b, regs, tmps, opname):
    for sw in ("v_permlane16_swap_b32", "v_permlane32_swap_b32"):
        for r, t in zip(regs, tmps): b.append(vop("v_mov_b32", t, r))
        for r, t in zip(regs, tmps): b.append(perm(sw, r, t))
        for r, t in zip(regs, tmps): b.append(vop(opname, r, r, t))

def check_and_store(p, name):
    b = p.block("k1_check")
    tm = [V(32 + 2 * t) for t in range(7)]
    lane_reduce(b, vL, tm, "v_add_f32")
    lo, hi, bad = sT[0], sT[1], S(64, 2)
    b += [smov(lo, hex(f2u(2.0 ** -32))), smov(hi, hex(f2u(2.0 ** 32))), raw("s_mov_b64 s[64:65], 0", 'salu', w=bad)]
    for t in range(7):
        b += [vop("v_cmp_nle_f32", 'vcc', lo, vL[t]), raw("s_or_b64 s[64:65], s[64:65], vcc", 'salu', w=bad + [('scc', 0)], r=bad + [('vcc', 0)]),
              vop("v_cmp_nge_f32", 'vcc', hi, vL[t]), raw("s_or_b64 s[64:65], s[64:65], vcc", 'salu', w=bad + [('scc', 0)], r=bad + [('vcc', 0)])]
    b += [salu("s_or_b32", sT[0], S(64), S(65)), salu("s_lshl_b32", sT[1], sWAVE, 2), salu("s_add_u32", sT[1], sT[1], RING(0) + 32768),
          vop("v_mov_b32", V(48), sT[1]), vop("v_mov_b32", V(49), sT[0]), vop("v_mov_b32", V(50), RING(0) + 32768),
          dsw("ds_write_b32", V(48), V(49), 0), waitlgkm0(), bar(), dsr("ds_read_b128", V(52, 4), V(50), 0)]
    for t in range(7): b.append(trans("v_rcp_f32", tm[t], vL[t]))
    b += [vop("v_or_b32", V(52), V(52), V(53)), vop("v_or3_b32", V(52), V(52), V(54), V(55)), vop("v_readfirstlane_b32", sT[0], V(52)),
          scmp("s_cmp_eq_u32", sT[0], 0), br("s_cbranch_scc1", f"L_{name}_store"),
          scmp("s_cmp_eq_u32", sPASS, 0), br("s_cbranch_scc1", f"L_{name}_maxpass")]
    b = p.block("k1_store")
    b.append(label(f"L_{name}_store"))
    voff = V(1)
    b += [vop("v_and_b32", voff, 63, V(0)), vop("v_lshlrev_b32", voff, 4, voff)]
    for t in range(7):
        rc = V(32 + 2 * t, 2)
        if t < 5: R = V(96 + 32 * t, 32)
        else:
            R = V(48, 32)
            for n in range(32): b.append(vop("v_accvgpr_read_b32", R[n:n+1], A(32 * (t - 5) + n)))
        for n in range(0, 32, 2): b.append(vop("v_pk_mul_f32", R[n:n+2], R[n:n+2], rc, extra="op_sel_hi:[1,0]"))
        for m in range(4):
            r = R[8*m:8*m+8]
            for n in range(4): b.append(vop("v_cvt_pk_bf16_f32", r[n:n+1], r[2*n:2*n+1], r[2*n+1:2*n+2]))
            off = m * 7168 + t * 1024
            b.append(smov(sT[m % 2], off & ~4095))
            b.append(vst("buffer_store_dwordx4", r[0:4], voff, SRD_O, sT[m % 2], off & 4095, CFG['o_flags']))
    stamp(b, 5)
    if CFG['stamps']:
        b.append(waitall())
        stamp(b, 6)
        b += [waitlgkm0(), raw("s_load_dwordx2 s[40:41], s[0:1], 96", w=S(40, 2)), waitlgkm0(),
              salu("s_add_u32", S(40), S(40), "0x4000000"), Ins("s_addc_u32 s41, s41, 0", 'salu', w=S(41), r=S(41)),
              smov(S(42), "0x100000"), smov(S(43), "0x20000"),
              salu("s_lshl_b32", sT[0], S(2), 2), salu("s_add_u32", sT[0], sT[0], sWAVE), salu("s_lshl_b32", sT[0], sT[0], 6)]
        for n in range(7): b += [vop("v_mov_b32", V(8 + n), S(80 + 2 * n))]
        b += [vop("v_mov_b32", V(15), 0), vop("v_mov_b32", V(2), 0), raw("s_mov_b64 exec, 1", 'salu', w=[('exec', 0)]),
              vst("buffer_store_dwordx4", V(8, 4), V(2), S(40, 4), sT[0], 0), vst("buffer_store_dwordx4", V(12, 4), V(2), S(40, 4), sT[0], 16)]
    b += [label(f"L_{name}_end"), raw("s_endpgm")]

def maxpass(p, name):
    b = p.block("k1_max_pre")
    b.append(label(f"L_{name}_maxpass"))
    b += [smov(sPASS, 1), smov(sKV, 0), smov(sCNT, 32), bar()]
    for t in range(7): b.append(vop("v_mov_b32", vL[t], "0xff800000"))
    b = p.block("k1_max_loop")
    b.append(label(f"L_{name}_maxl"))
    b.append(salu("s_add_u32", M0, sMK, 0))
    for pp in range(4): b.append(dma(vKD[pp & 1], SRD_K, sKV, pp * 1024, CFG['kv_flags']))
    b += [salu("s_add_u32", sKV, sKV, 8192), waitall(), bar()]
    for f in range(8): b.append(dsr("ds_read_b128", KF(f), vKA[f & 3], (f >> 2) * 4096))
    b += [waitlgkm0(), bar()]
    for t in range(7):
        s = SB(t & 1)
        for kt in range(2):
            for ds in range(4):
                d = s[4*kt:4*kt+4]
                b.append(mfma(d, KF(4 * kt + ds), QF(t, ds), 0 if ds == 0 else d))
        for n in range(0, 8, 2): b.append(vop("v_max3_f32", vL[t], vL[t], s[n:n+1], s[n+1:n+2]))
    b += [salu("s_sub_u32", sCNT, sCNT, 1), scmp("s_cmp_lg_u32", sCNT, 0), br("s_cbranch_scc1", f"L_{name}_maxl")]
    b = p.block("k1_max_post")
    lane_reduce(b, vL, [V(32 + t) for t in range(7)], "v_max_f32")
    for t in range(7):
        for r in NEGM(t): b.append(vop("v_sub_f32", [r], 0, vL[t]))
    b.append(smov(sKV, 0))
    for tile in range(4):
        for c, ins in kv_load_ops(tile, tile): b.append(ins)
    b.append(br("s_branch", f"L_{name}_at"))

def build(name="attn_kernel"):
    p = Program()
    prologue(p, name); qproj(p, name); attention(p, name); check_and_store(p, name); maxpass(p, name)
    main = [("k1_pro", {})] + [("k1_qp_loop", {'W': 4 * k, 'X': 2 * k}) for k in range(6)] + [("k1_qp_tail", {})]
    at = [("k1_at_entry", {})] + [("k1_at_loop", {'KV': 4 * k}) for k in range(7)] + [("k1_at_tail", {})] + [("k1_check", {})]
    fb = [("k1_max_pre", {})] + [("k1_max_loop", {})] * 2 + [("k1_max_post", {})]
    traces = [main + at + [("k1_store", {})], main + at + fb + at + [("k1_store", {})]]
    for tr in traces: p.insert_waits(tr)
    n = 0
    for tr in traces: n += p.fix_hazards(tr, verbose=CFG.get('verbose'))
    return p, n
if __name__ == "__main__":
    CFG['verbose'] = True
    p, n = build()
    print("nops", n)
    open("k1.txt", "w").write(p.text())
```

```python
from core import *
from k1 import srd, vop, f2u
CFG = dict(o_flags="", w_flags="", out_flags="", stamps=False)
SRD_O, SRD_W, SRD_C = S(4, 4), S(8, 4), S(12, 4)
sWAVE, sO, sW, sMW, sCNT = S(24), S(25), S(26), S(27), S(28)
sT = [S(62 + i) for i in range(10)]
M0 = 'm0'
vWA = [V(1 + i) for i in range(8)]
vWD = [V(9 + i) for i in range(8)]
vOD = [V(17), V(18)]
vR = [V(19 + i) for i in range(4)]
vC = V(23)
ACC = lambda nt, qt: V(32 + (nt * 7 + qt) * 4, 4)
FA = lambda nt: A(4 * nt, 4)
FB = lambda buf, qt: A(32 + 28 * buf + 4 * qt, 4)
WAVE_LDS = 40960

def stamp(b, n):
    if CFG['stamps']: b.append(raw(f"s_memrealtime s[{80+2*n}:{81+2*n}]", 'raw'))

def ld_o(ks, tag):
    o = []
    for qt in range(7):
        o.append(('G', vld("buffer_load_dwordx4", FB(ks & 3, qt), vOD[qt >> 2], SRD_O, sO, (qt & 3) * 1024, CFG['o_flags'], tag=('O', tag))))
    o.append(('S', salu("s_add_u32", sO, sO, 7168)))
    return o
def ld_w(ks, tag):
    o = []
    for pc in range(8):
        if pc % 4 == 0: o.append(('S', salu("s_add_u32", M0, sMW, (ks & 3) * 8192 + (pc >> 2) * 4096)))
        o.append(('G', dma(vWD[pc], SRD_W, sW, (pc & 3) * 1024, CFG['w_flags'], tag=('W', tag))))
    o.append(('S', salu("s_add_u32", sW, sW, 65536)))
    return o

def prologue(p, name):
    b = p.block("k2_pro")
    b += [scmp("s_cmp_ge_u32", S(2), 256), br("s_cbranch_scc1", f"L_{name}_end")]
    stamp(b, 0)
    b += [raw("s_load_dwordx2 s[36:37], s[0:1], 32", w=S(36, 2)), raw("s_load_dwordx2 s[38:39], s[0:1], 72", w=S(38, 2)),
          raw("s_load_dwordx2 s[40:41], s[0:1], 80", w=S(40, 2)), raw("s_load_dwordx2 s[42:43], s[0:1], 96", w=S(42, 2))]
    lane, i16, g, r_, c_, tmp, tmp2 = V(24), V(25), V(26), V(27), V(28), V(29), V(30)
    b += [vop("v_lshrrev_b32", tmp, 6, V(0)), vop("v_and_b32", lane, 63, V(0)), vop("v_readfirstlane_b32", sWAVE, tmp),
          vop("v_and_b32", i16, 15, lane), vop("v_lshrrev_b32", g, 4, lane)]
    x_, j_, blk, bb, rho, ct, t0, t1, t2 = sT[:9]
    b += [salu("s_and_b32", x_, S(2), 7), salu("s_lshr_b32", j_, S(2), 3), salu("s_lshr_b32", blk, x_, 2),
          salu("s_and_b32", bb, x_, 1), salu("s_lshl_b32", bb, bb, 2), salu("s_and_b32", t0, j_, 3), salu("s_add_u32", bb, bb, t0),
          salu("s_bfe_u32", rho, j_, "0x10002"),
          salu("s_bfe_u32", ct, x_, "0x10001"), salu("s_lshl_b32", ct, ct, 2), salu("s_lshr_b32", t0, j_, 3), salu("s_add_u32", ct, ct, t0),
          salu("s_mul_i32", sMW, sWAVE, WAVE_LDS, scc=False)]
    b += [vop("v_lshlrev_b32", tmp, 11, g), vop("v_lshlrev_b32", tmp2, 1, g), vop("v_xor_b32", tmp2, tmp2, i16), vop("v_lshlrev_b32", tmp2, 4, tmp2),
          vop("v_xor_b32", V(31), 128, tmp2)]
    for pc in range(8):
        b += [vop("v_add_u32", vWD[pc], tmp, tmp2 if pc % 2 == 0 else V(31)), vop("v_add_u32", vWD[pc], pc * 8192 - (pc & 3) * 1024, vWD[pc])]
    b += [vop("v_lshlrev_b32", vOD[0], 4, lane), vop("v_add_u32", vOD[1], 4096, vOD[0])]
    b.append(waitlgkm0())
    b.append(scmp("s_cmp_eq_u32", blk, 0))
    for hl in range(2):
        b.append(Ins(f"s_cselect_b32 s{36+hl}, s{36+hl}, s{38+hl}", 'salu', w=S(36+hl), r=S(36+hl)+S(38+hl)+[('scc',0)]))
    b += [salu("s_lshl_b32", t0, sWAVE, 21), salu("s_lshl_b32", t1, ct, 8), salu("s_add_u32", t0, t0, t1), salu("s_sub_u32", t2, 2097152, t1)]
    srd(b, SRD_W, S(36, 2), t0, t2)
    b += [salu("s_lshl_b32", t0, blk, 3), salu("s_add_u32", t0, t0, bb), salu("s_lshl_b32", t0, t0, 1), salu("s_add_u32", t0, t0, rho),
          salu("s_lshl_b32", t0, t0, 2), salu("s_add_u32", t0, t0, sWAVE), salu("s_mul_i32", t0, t0, 229376, scc=False)]
    srd(b, SRD_O, S(42, 2), t0, 229376)
    b += [smov(sO, 0), smov(sW, 0)]
    for c, ins in ld_w(0, 0) + ld_o(0, 0) + ld_w(1, 1) + ld_o(1, 1) + ld_w(2, 2) + ld_o(2, 2) + ld_w(3, 3): b.append(ins)
    b += [salu("s_mul_i32", t0, bb, 224, scc=False), salu("s_mul_i32", t1, rho, 112, scc=False), salu("s_add_u32", t0, t0, t1), salu("s_lshl_b32", t0, t0, 12),
          salu("s_lshl_b32", t1, blk, 11), salu("s_add_u32", t0, t0, t1), salu("s_lshl_b32", t1, ct, 8), salu("s_add_u32", t0, t0, t1)]
    srd(b, SRD_C, S(40, 2), t0, 111 * 4096 + 256)
    b += [vop("v_and_b32", tmp, 1, g), vop("v_lshlrev_b32", tmp, 1, tmp), vop("v_lshrrev_b32", tmp2, 1, g), vop("v_or_b32", tmp, tmp, tmp2),
          vop("v_lshlrev_b32", tmp, 4, tmp), vop("v_lshl_add_u32", tmp, i16, 12, tmp), salu("s_lshl_b32", t0, sWAVE, 6), vop("v_add_u32", vC, t0, tmp)]
    b += [vop("v_bfe_u32", r_, lane, 2, 2), vop("v_and_b32", c_, 3, lane),
          vop("v_lshl_add_u32", tmp, g, 2, r_), vop("v_lshlrev_b32", tmp, 8, tmp), vop("v_lshl_add_u32", tmp, c_, 3, tmp), vop("v_add_u32", tmp, sMW, tmp),
          vop("v_and_b32", g, 1, g), vop("v_lshl_add_u32", g, g, 2, r_), vop("v_lshlrev_b32", g, 5, g)]
    for nt in range(8): b += [vop("v_xor_b32", vWA[nt], nt * 32, g), vop("v_add_u32", vWA[nt], tmp, vWA[nt])]
    for n, xo in enumerate((0, 1, 2)):
        b += [salu("s_xor_b32", t0, sWAVE, xo), salu("s_mul_i32", t0, t0, 28672, scc=False), vop("v_add_u32", vR[n], t0, vOD[0])]
    for r in range(32, 256): b.append(vop("v_mov_b32", V(r), 0))
    b.append(waitvm(('W', 0)))
    for nt in range(8):
        for h in range(2): b.append(dsr("ds_read_b64_tr_b16", FA(nt)[2*h:2*h+2], vWA[nt], h * 4096))
    b.append(smov(sCNT, 7))
    stamp(b, 1)

def step(b, s, srel):
    gaps = [[] for _ in range(56)]
    if s + 1 <= 31:
        gaps[5].append(waitvm(('W', srel + 1)))
        for nt in range(8):
            for h in range(2): gaps[7 * nt + 6].append(dsr("ds_read_b64_tr_b16", FA(nt)[2*h:2*h+2], vWA[nt], ((s + 1) & 3) * 8192 + h * 4096))
    seq = []
    if s + 3 <= 31: seq += ld_o(s + 3, srel + 3)
    if s + 4 <= 31: seq += ld_w(s + 4, srel + 4)
    free = [g for g in range(7, 56) if g % 7 != 6]
    ng = sum(c == 'G' for c, _ in seq)
    stride = max(1, min(3, (len(free) - 1) // max(1, ng)))
    gpos = [free[n * stride] for n in range(ng)]
    n = 0
    for c, ins in seq:
        if c == 'G':
            gaps[gpos[n]].append(ins); n += 1
        else:
            prev = gpos[n - 1] if n else 5
            nxt_ = gpos[n] if n < ng else 56
            if prev + 1 < nxt_: gaps[nxt_ - 1 if nxt_ < 56 else prev + 1].insert(0, ins)
            else: gaps[prev].append(ins)
    if s + 4 <= 31:
        gaps[4].append(waitlgkm0())
    for j in range(56):
        nt, qt = divmod(j, 7)
        b.append(mfma(ACC(nt, qt), FA(nt), FB(s & 3, qt), ACC(nt, qt)))
        b += gaps[j]

def reduce_store(p, name):
    for w in range(4):
        b = p.block(f"k2_red{w}")
        b.append(label(f"L_{name}_red{w}"))
        def tiles(d): return [ACC(nt, qt) for nt in (2 * d, 2 * d + 1) for qt in range(7)]
        own = tiles(w)
        b += [waitlgkm0(), bar()]
        for n, t in enumerate(tiles(w ^ 1)): b.append(dsw("ds_write_b128", vR[0], t, n * 1024))
        for n, t in enumerate(tiles(w ^ 2)): b.append(dsw("ds_write_b128", vR[0], t, 14336 + n * 1024))
        b += [waitlgkm0(), bar()]
        t1, t2 = tiles(w ^ 1), tiles(w ^ 2)
        for n in range(14): b.append(dsr("ds_read_b128", t1[n], vR[1], n * 1024))
        for n in range(14): b.append(dsr("ds_read_b128", t2[n], vR[2], 14336 + n * 1024))
        for n in range(14):
            for r in range(4): b.append(vop("v_add_f32", own[n][r:r+1], own[n][r:r+1], t1[n][r:r+1]))
        for n, t in enumerate(tiles(w ^ 3)): b.append(dsw("ds_write_b128", vR[1], t, n * 1024))
        for n in range(14):
            for r in range(4): b.append(vop("v_add_f32", own[n][r:r+1], own[n][r:r+1], t2[n][r:r+1]))
        b += [waitlgkm0(), bar()]
        for n in range(14): b.append(dsr("ds_read_b128", t1[n], vR[2], n * 1024))
        for qt in range(7):
            for n in (qt, 7 + qt):
                for r in range(4): b.append(vop("v_add_f32", own[n][r:r+1], own[n][r:r+1], t1[n][r:r+1]))
        for qt in range(7):
            a0, a1 = own[qt], own[7 + qt]
            o = t2[qt]
            b += [vop("v_cvt_pk_bf16_f32", o[0:1], a0[0:1], a0[1:2]), vop("v_cvt_pk_bf16_f32", o[1:2], a0[2:3], a0[3:4]),
                  vop("v_cvt_pk_bf16_f32", o[2:3], a1[0:1], a1[1:2]), vop("v_cvt_pk_bf16_f32", o[3:4], a1[2:3], a1[3:4])]
        for qt in range(7):
            o = t2[qt]
            b += [perm("v_permlane16_swap_b32", o[0:1], o[2:3]), perm("v_permlane16_swap_b32", o[1:2], o[3:4])]
        for qt in range(7):
            b += [smov(sT[qt % 2], qt * 65536), vst("buffer_store_dwordx4", t2[qt], vC, SRD_C, sT[qt % 2], 0, CFG['out_flags'])]
        b.append(br("s_branch", f"L_{name}_fin"))
    b = p.block("k2_fin")
    b.append(label(f"L_{name}_fin"))
    stamp(b, 3)
    if CFG['stamps']:
        b.append(waitall())
        stamp(b, 4)
        b += [waitlgkm0(), salu("s_add_u32", S(40), S(42), "0x4100000"), Ins("s_addc_u32 s41, s43, 0", 'salu', w=S(41), r=S(43)),
              smov(S(42), "0x100000"), smov(S(43), "0x20000"),
              salu("s_lshl_b32", sT[0], S(2), 2), salu("s_add_u32", sT[0], sT[0], sWAVE), salu("s_lshl_b32", sT[0], sT[0], 6)]
        for n in range(5): b += [vop("v_mov_b32", V(8 + n), S(80 + 2 * n))]
        b += [vop("v_mov_b32", V(2), 0), raw("s_mov_b64 exec, 1", 'salu', w=[('exec', 0)]),
              vst("buffer_store_dwordx4", V(8, 4), V(2), S(40, 4), sT[0], 0), vst("buffer_store_dwordx4", V(12, 4), V(2), S(40, 4), sT[0], 16)]
    b += [label(f"L_{name}_end"), raw("s_endpgm")]

def build(name="oproj_kernel"):
    p = Program()
    prologue(p, name)
    b = p.block("k2_loop")
    b.append(label(f"L_{name}_l"))
    for s in range(4): step(b, s, s)
    b += [salu("s_sub_u32", sCNT, sCNT, 1), scmp("s_cmp_lg_u32", sCNT, 0), br("s_cbranch_scc1", f"L_{name}_l")]
    b = p.block("k2_tail")
    for s in range(28, 32): step(b, s, s)
    stamp(b, 2)
    for w in range(1, 4): b += [scmp("s_cmp_eq_u32", sWAVE, w), br("s_cbranch_scc1", f"L_{name}_red{w}")]
    reduce_store(p, name)
    n = 0
    traces = [[("k2_pro", {})] + [("k2_loop", {'W': 4 * k, 'O': 4 * k}) for k in range(7)] + [("k2_tail", {}), (f"k2_red{w}", {}), ("k2_fin", {})] for w in range(4)]
    for tr in traces: p.insert_waits(tr)
    for tr in traces: n += p.fix_hazards(tr, verbose=CFG.get('verbose'))
    return p, n
if __name__ == "__main__":
    CFG['verbose'] = True
    p, n = build()
    print("nops", n)
    open("k2.txt", "w").write(p.text())
```

```python
import sys, importlib
import k1, k2
REF = "concat_heads__mha_block_cached__mha_block_cached__near_ridge.s.ref"
def desc(name):
    return f""".amdhsa_kernel {name}
  .amdhsa_next_free_vgpr 512
  .amdhsa_next_free_sgpr 102
  .amdhsa_accum_offset 256
  .amdhsa_group_segment_fixed_size 0
  .amdhsa_kernarg_size 104
  .amdhsa_user_sgpr_count 2
  .amdhsa_user_sgpr_kernarg_segment_ptr 1
  .amdhsa_system_sgpr_workgroup_id_x 1
.end_amdhsa_kernel
"""
def generate(cfg1=None, cfg2=None):
    k1.CFG.update(cfg1 or {}); k2.CFG.update(cfg2 or {})
    head = [l for l in open(REF).read().split("\n") if l.startswith(";   offset") or l.startswith("; Kernarg")]
    s = "\n".join(head) + "\n"
    s += "; @launch kernel=attn_kernel grid=(256,1,1) block=(256,1,1) lds=163840\n"
    s += "; @launch kernel=oproj_kernel grid=(256,1,1) block=(256,1,1) lds=163840\n"
    s += '.amdgcn_target "amdgcn-amd-amdhsa--gfx950"\n.text\n'
    for name, mod in (("attn_kernel", k1), ("oproj_kernel", k2)):
        p, n = mod.build(name)
        s += f".globl {name}\n.p2align 8\n.type {name},@function\n{name}:\n" + p.text()
    s += '.section .rodata,"a"\n.p2align 6\n' + desc("attn_kernel") + ".p2align 6\n" + desc("oproj_kernel")
    return s
if __name__ == "__main__":
    out = sys.argv[1] if len(sys.argv) > 1 else "concat_heads__mha_block_cached__mha_block_cached__near_ridge.s"
    cfg = eval(sys.argv[2]) if len(sys.argv) > 2 else {}
    open(out, "w").write(generate(cfg.get('k1'), cfg.get('k2')))
    print("wrote", out)
```

```python
from core import *
import atpat, struct

def f2u(x): return struct.unpack("<I", struct.pack("<f", x))[0]
RING = lambda r: r * 40960
CFG = dict(kv_flags="nt", x_flags="", w_flags="", o_flags="", stamps=False)

SRD_X, SRD_W, SRD_K, SRD_V, SRD_O = S(4, 4), S(8, 4), S(12, 4), S(16, 4), S(20, 4)
sWAVE, sHH, sRHO = S(24), S(25), S(26)
sX, sW, sKV = S(27), S(28), S(29)
sMX, sMW, sMK, sMV = S(30), S(31), S(32), S(33)
sCNT, sPASS = S(34), S(35)
sROT = S(76)
sSCALE = S(60, 2)
sT = [S(62 + i) for i in range(10)]
M0 = 'm0'
vWA = [V(1 + i) for i in range(8)]
vXA = [V(9), V(10)]
vKD = [V(13), V(14)]; vVD = [V(15), V(16)]
vXD = [V(17 + i) for i in range(7)]
vWD = [V(24 + i) for i in range(4)]
vT = [V(28 + i) for i in range(4)]
ACC = lambda dt, qt: V(32 + (qt * 8 + dt) * 4, 4)
QA = lambda dt: A(176 + 4 * dt, 4)
QB = lambda buf, qt: A((208 if buf == 0 else 0) + 4 * qt, 4)
vKA = [V(1 + i) for i in range(4)]
vVA = [V(5 + i) for i in range(8)]
vL = [V(17 + i) for i in range(7)]
PB = lambda buf: V(24 + 4 * buf, 4)
SB = lambda buf: V(32 + 8 * buf, 8)
NEGM = lambda t: V(48 + 4 * t, 4)
def OT(t, dt): return V(96 + 32 * t + 4 * dt, 4) if t < 5 else A(32 * (t - 5) + 4 * dt, 4)
QF = lambda t, ds: A(64 + 16 * t + 4 * ds, 4)
KF = lambda f: A(176 + 4 * f, 4)
VF = lambda dt: A(208 + 4 * dt, 4)

def vop(name, d, *s, **k): return valu(name, d, *s, **k)

def srd(b, dst, ptr, off_lo, size):
    b.append(salu("s_add_u32", [dst[0]], [ptr[0]], off_lo))
    b.append(Ins(f"s_addc_u32 {rt([dst[1]])}, {rt([ptr[1]])}, 0", 'salu', w=[dst[1], ('scc', 0)], r=[ptr[1], ('scc', 0)]))
    b.append(smov([dst[2]], size))
    b.append(smov([dst[3]], "0x20000"))

def stamp(b, n):
    if CFG['stamps']:
        b += [raw("s_memtime s[98:99]"), raw("s_memrealtime s[100:101]"), waitlgkm0(), smov(S(80 + n), S(100)), smov(S(88 + n), S(98))]

def prologue(p, name):
    b = p.block("k1_pro")
    P = lambda i: S(36 + 2 * i, 2)
    b += [scmp("s_cmp_ge_u32", S(2), 256), br("s_cbranch_scc1", f"L_{name}_end")]
    stamp(b, 0)
    b += [raw("s_load_dwordx16 s[36:51], s[0:1], 0", w=S(36, 16)), raw("s_load_dwordx4 s[52:55], s[0:1], 64", w=S(52, 4)),
          raw("s_load_dwordx2 s[58:59], s[0:1], 96", w=S(58, 2))]
    lane, i16, g, r_, c_ = V(28), V(29), V(30), V(31), V(11)
    b += [vop("v_lshrrev_b32", V(12), 6, V(0)), vop("v_and_b32", lane, 63, V(0)),
          vop("v_readfirstlane_b32", sWAVE, V(12)),
          vop("v_and_b32", i16, 15, lane), vop("v_lshrrev_b32", g, 4, lane)]
    b += [salu("s_lshr_b32", sHH, sWAVE, 1), salu("s_and_b32", sRHO, sWAVE, 1)]
    x_, j_, blk, bb, hp = sT[0], sT[1], sT[2], sT[3], sT[4]
    b += [salu("s_and_b32", x_, S(2), 7), salu("s_lshr_b32", j_, S(2), 3), salu("s_lshr_b32", blk, x_, 2),
          salu("s_and_b32", bb, x_, 1), salu("s_lshl_b32", bb, bb, 2), salu("s_and_b32", sT[5], j_, 3), salu("s_add_u32", bb, bb, sT[5]),
          salu("s_bfe_u32", hp, x_, "0x10001"), salu("s_lshl_b32", hp, hp, 3), salu("s_lshr_b32", sT[5], j_, 2), salu("s_add_u32", hp, hp, sT[5])]
    t0, t1, t2, t3 = sT[5], sT[6], sT[7], sT[8]
    b += [salu("s_mul_i32", t0, sHH, 40960, scc=False),
          salu("s_lshl_b32", t1, sRHO, 12),
          salu("s_add_u32", sMK, t0, t1), salu("s_add_u32", sMV, sMK, RING(2)), salu("s_add_u32", sMW, sMV, 8192),
          salu("s_mul_i32", t2, sRHO, 7168, scc=False), salu("s_add_u32", sMX, t0, t2), salu("s_add_u32", sMX, sMX, 8192)]
    tmp, tmp2 = V(12), V(1)
    b += [vop("v_lshrrev_b32", tmp, 3, lane)]
    b += [salu("s_mul_i32", t2, sHH, 112, scc=False), salu("s_mul_i32", t3, sRHO, 56, scc=False), salu("s_add_u32", t2, t2, t3)]
    b += [vop("v_add_u32", tmp, t2, tmp), vop("v_lshlrev_b32", tmp, 11, tmp)]
    b += [vop("v_and_b32", tmp2, 7, lane), vop("v_xor_b32", tmp2, tmp2, g)]
    b += [salu("s_lshl_b32", t3, sRHO, 2)]
    b += [vop("v_xor_b32", tmp2, t3, tmp2), vop("v_lshlrev_b32", V(2), 4, tmp2), vop("v_xor_b32", V(3), 64, V(2))]
    for pp in range(7):
        imm = (pp & 3) * 1024
        b += [vop("v_add_u32", vXD[pp], tmp, V(2) if pp % 2 == 0 else V(3)), vop("v_add_u32", vXD[pp], pp * 16384 - imm, vXD[pp])]
    b += [salu("s_lshl_b32", t3, sRHO, 4), vop("v_add_u32", tmp, t3, g), vop("v_lshlrev_b32", tmp, 13, tmp),
          salu("s_lshl_b32", t3, sHH, 8), vop("v_add_u32", tmp, t3, tmp),
          vop("v_lshlrev_b32", tmp2, 1, g), vop("v_xor_b32", tmp2, tmp2, i16), vop("v_lshlrev_b32", V(2), 4, tmp2), vop("v_xor_b32", V(3), 128, V(2))]
    for pp in range(4):
        b += [vop("v_add_u32", vWD[pp], tmp, V(2) if pp < 2 else V(3)), vop("v_add_u32", vWD[pp], pp * 32768 - pp * 1024, vWD[pp])]
    b += [vop("v_lshlrev_b32", tmp, 8, g), vop("v_add_u32", tmp, t1, tmp), vop("v_add_u32", vVD[0], tmp, V(2)), vop("v_add_u32", vVD[1], tmp, V(3))]
    b += [vop("v_and_b32", tmp2, 2, g), vop("v_lshlrev_b32", tmp2, 1, tmp2), vop("v_and_b32", V(2), 1, g), vop("v_or_b32", tmp2, tmp2, V(2)),
          vop("v_xor_b32", tmp2, tmp2, i16), vop("v_lshlrev_b32", V(2), 4, tmp2), vop("v_xor_b32", V(3), 128, V(2)),
          vop("v_add_u32", vKD[0], tmp, V(2)), vop("v_add_u32", vKD[1], tmp, V(3))]
    b.append(waitlgkm0())
    b.append(scmp("s_cmp_eq_u32", blk, 0))
    for i in range(4):
        for hl in range(2):
            b.append(Ins(f"s_cselect_b32 s{36+2*i+hl}, s{36+2*i+hl}, s{46+2*i+hl}", 'salu', w=S(36+2*i+hl), r=S(36+2*i+hl)+S(46+2*i+hl)+[('scc',0)]))
    b += [salu("s_mul_i32", t0, bb, 0 if CFG.get('same_xw') else 458752, scc=False)]; srd(b, SRD_X, P(0), t0, 458752)
    b += [salu("s_lshl_b32", t0, hp, 9)]
    if CFG.get('same_xw'): b.append(smov(t0, 0))
    b += [salu("s_sub_u32", t2, 8388608, t0)]; srd(b, SRD_W, P(3), t0, t2)
    b += [smov(sX, 0), smov(sW, 0)]
    rot = CFG.get('rot', 0)
    if rot == 0: b.append(smov(sROT, 0))
    else: b += [salu("s_lshr_b32", sROT, S(2), rot[0]), salu("s_mul_i32", sROT, sROT, rot[1], scc=False), salu("s_and_b32", sROT, sROT, 31), salu("s_lshl_b32", sROT, sROT, 13)]
    b.append(smov(sKV, sROT))
    def ldx(pair):
        for pp in range(7):
            if pp % 4 == 0: b.append(salu("s_add_u32", M0, sMX, (pair & 1) * 18432 + (pp >> 2) * 4096))
            b.append(dma(vXD[pp], SRD_X, sX, (pp & 3) * 1024, CFG['x_flags'], tag=('X', pair)))
        b.append(salu("s_add_u32", sX, sX, 128))
    def ldw(ks):
        b.append(salu("s_add_u32", M0, sMW, (ks & 3) * 8192))
        for pp in range(4): b.append(dma(vWD[pp], SRD_W, sW, pp * 1024, CFG['w_flags'], tag=('W', ks)))
        b.append(salu("s_add_u32", sW, sW, 262144))
    ldx(0); ldw(0); ldw(1); ldx(1); ldw(2); ldw(3)
    b += [salu("s_lshl_b32", t0, bb, 5), salu("s_lshl_b32", t2, hp, 1), salu("s_add_u32", t0, t0, t2), salu("s_add_u32", t0, t0, sHH),
          salu("s_lshl_b32", t0, t0, 18)]
    if CFG.get('same_kv'): b.append(salu("s_lshl_b32", t0, sHH, 18))
    srd(b, SRD_K, P(1), t0, 262144); srd(b, SRD_V, P(2), t0, 262144)
    b += [salu("s_lshl_b32", t0, blk, 3), salu("s_add_u32", t0, t0, bb), salu("s_lshl_b32", t0, t0, 1), salu("s_add_u32", t0, t0, sRHO), salu("s_lshl_b32", t0, t0, 5),
          salu("s_lshl_b32", t2, hp, 1), salu("s_add_u32", t0, t0, t2), salu("s_add_u32", t0, t0, sHH), salu("s_mul_i32", t0, t0, 28672, scc=False)]
    srd(b, SRD_O, S(58, 2), t0, 28672)
    b += [smov(sPASS, 0), smov([sSCALE[0]], hex(f2u(1.4426950408889634 / 128 ** 0.5))), smov([sSCALE[1]], 0)]
    b += [vop("v_lshrrev_b32", tmp, 1, i16), vop("v_xor_b32", tmp, tmp, g), vop("v_lshlrev_b32", tmp, 4, tmp), vop("v_lshlrev_b32", tmp2, 7, i16),
          salu("s_mul_i32", t0, sRHO, 40960, scc=False), salu("s_add_u32", t0, t0, 8192),
          vop("v_add_u32", tmp2, t0, tmp2), vop("v_add_u32", vXA[0], tmp2, tmp), vop("v_xor_b32", tmp, 64, tmp), vop("v_add_u32", vXA[1], tmp2, tmp)]
    b += [vop("v_bfe_u32", r_, lane, 2, 2), vop("v_and_b32", c_, 3, lane),
          salu("s_mul_i32", t0, sHH, 40960, scc=False), salu("s_add_u32", t0, t0, RING(2) + 8192),
          vop("v_lshl_add_u32", tmp, g, 3, r_), vop("v_lshlrev_b32", tmp, 8, tmp), vop("v_lshl_add_u32", tmp, c_, 3, tmp), vop("v_add_u32", tmp, t0, tmp),
          vop("v_and_b32", g, 1, g), vop("v_lshl_add_u32", g, g, 2, r_), vop("v_lshlrev_b32", g, 5, g)]
    for dt in range(8):
        b += [vop("v_xor_b32", vWA[dt], dt * 32, g), vop("v_add_u32", vWA[dt], tmp, vWA[dt])]
    for r in range(32, 256): b.append(vop("v_mov_b32", V(r), 0))
    b += [waitvm(('X', 0), ('W', 0)), bar()]
    for dt in range(8):
        for h in range(2): b.append(dsr("ds_read_b64_tr_b16", QA(dt)[2*h:2*h+2], vWA[dt], h * 1024))
    for qt in range(7): b.append(dsr("ds_read_b128", QB(0, qt), vXA[0], qt * 2048))
    b.append(smov(sCNT, 6))
    stamp(b, 1)

def kv_load_ops(tile, tagoff):
    o = []
    for half, (sM, srd_, vd) in enumerate(((sMK, SRD_K, vKD), (sMV, SRD_V, vVD))):
        o.append(('S', salu("s_add_u32", M0, sM, (tile & 3) * 8192)))
        for pp in range(4): o.append(('G', dma(vd[pp & 1], srd_, sKV, pp * 1024, CFG['kv_flags'], tag=('KV', tagoff))))
    o.append(('S', salu("s_add_u32", sKV, sKV, 8192)))
    o.append(('S', salu("s_and_b32", sKV, sKV, 0x3ffff)))
    return o

def qp_step(b, s, srel, last_w, last_x, kv=()):
    gaps = [[] for _ in range(56)]
    nxt = s + 1 <= 31
    if nxt:
        w = waitvm(('W', srel + 1))
        if (s + 1) % 2 == 0: w.need.append(('X', (srel + 1) // 2))
        gaps[5] += [w, waitlgkm0()]
        gaps[6].append(bar())
        for dt in range(8):
            for h in range(2): gaps[7 * dt + 6].append(dsr("ds_read_b64_tr_b16", QA(dt)[2*h:2*h+2], vWA[dt], ((s + 1) & 3) * 8192 + h * 1024))
        pair, par = (s + 1) >> 1, (s + 1) & 1
        for qt, g in enumerate((7, 8, 9, 10, 11, 12, 14)):
            gaps[g].append(dsr("ds_read_b128", QB((s + 1) & 1, qt), vXA[par], (pair & 1) * 18432 + qt * 2048))
    elif kv:
        gaps[5].append(waitlgkm0()); gaps[6].append(bar())
    seq = []
    if s % 2 == 1 and (s + 3) // 2 <= last_x:
        pair = (s + 3) // 2
        for pp in range(7):
            if pp % 4 == 0: seq.append(('S', salu("s_add_u32", M0, sMX, (pair & 1) * 18432 + (pp >> 2) * 4096)))
            seq.append(('G', dma(vXD[pp], SRD_X, sX, (pp & 3) * 1024, CFG['x_flags'], tag=('X', (srel + 3) // 2))))
        seq.append(('S', salu("s_add_u32", sX, sX, 128)))
    if s + 4 <= last_w:
        seq.append(('S', salu("s_add_u32", M0, sMW, (s & 3) * 8192)))
        for pp in range(4): seq.append(('G', dma(vWD[pp], SRD_W, sW, pp * 1024, CFG['w_flags'], tag=('W', srel + 4))))
        seq.append(('S', salu("s_add_u32", sW, sW, 262144)))
    for t in kv: seq += kv_load_ops(t, t)
    free = [g for g in range(15, 56) if g % 7 != 6]
    ng = sum(c == 'G' for c, _ in seq)
    stride = max(1, min(3, (len(free) - 1) // max(1, ng)))
    gpos = [free[min(n * stride, len(free) - 1)] for n in range(ng)]
    assert len(set(gpos)) == ng
    n = 0
    for c, ins in seq:
        if c == 'G':
            gaps[gpos[n]].append(ins); n += 1
        else:
            prev = gpos[n - 1] if n else 13
            nxt_ = gpos[n] if n < ng else 56
            if prev + 1 < nxt_:
                gg = gaps[nxt_ - 1 if nxt_ < 56 else prev + 1]
                k_ = 0
                while k_ < len(gg) and gg[k_].kind == 'salu': k_ += 1
                gg.insert(k_, ins)
            else: gaps[prev].append(ins)
    for j in range(56):
        dt, qt = divmod(j, 7)
        b.append(mfma(ACC(dt, qt), QA(dt), QB(s & 1, qt), ACC(dt, qt)))
        b += gaps[j]

def qproj(p, name):
    b = p.block("k1_qp_loop")
    b.append(label(f"L_{name}_qp"))
    for s in range(4): qp_step(b, s, s, 31, 15)
    b += [salu("s_sub_u32", sCNT, sCNT, 1), scmp("s_cmp_lg_u32", sCNT, 0), br("s_cbranch_scc1", f"L_{name}_qp")]
    b = p.block("k1_qp_tail")
    kvs = {24: (0,), 29: (1, 2), 31: (3,)}
    for s in range(24, 32): qp_step(b, s, s, 31, 15, kv=kvs.get(s, ()))
    stamp(b, 2)
    for qt in range(7):
        units = []
        for ds in range(4):
            t0, t1 = ACC(2 * ds, qt), ACC(2 * ds + 1, qt)
            units.append((t0, t1))
        for t0, t1 in units:
            for t in (t0, t1):
                b += [vop("v_pk_mul_f32", t[0:2], t[0:2], sSCALE, extra="op_sel_hi:[1,0]"), vop("v_pk_mul_f32", t[2:4], t[2:4], sSCALE, extra="op_sel_hi:[1,0]")]
        for t0, t1 in units:
            for t in (t0, t1):
                b += [vop("v_cvt_pk_bf16_f32", t[0:1], t[0:1], t[1:2]), vop("v_cvt_pk_bf16_f32", t[1:2], t[2:3], t[3:4])]
        for t0, t1 in units:
            b += [perm("v_permlane16_swap_b32", t0[0:1], t1[0:1]), perm("v_permlane16_swap_b32", t0[1:2], t1[1:2])]
        for ds, (t0, t1) in enumerate(units):
            q = QF(qt, ds)
            for n, src in enumerate((t0[0:1], t0[1:2], t1[0:1], t1[1:2])): b.append(vop("v_accvgpr_write_b32", q[n:n+1], src))
    lane, i16, g, r_, c_, tmp, tmp2 = V(28), V(29), V(30), V(31), V(32), V(33), V(34)
    t0 = sT[0]
    b += [vop("v_and_b32", lane, 63, V(0)), vop("v_and_b32", i16, 15, lane), vop("v_lshrrev_b32", g, 4, lane),
          vop("v_and_b32", tmp, 1, g), vop("v_lshlrev_b32", tmp, 1, tmp), vop("v_lshrrev_b32", tmp2, 1, g), vop("v_or_b32", tmp, tmp, tmp2),
          vop("v_and_b32", tmp2, 1, i16), vop("v_xor_b32", tmp, tmp, tmp2), vop("v_and_b32", tmp2, 6, i16), vop("v_lshlrev_b32", tmp2, 1, tmp2),
          vop("v_xor_b32", tmp, tmp, tmp2), vop("v_lshlrev_b32", tmp, 4, tmp),
          salu("s_mul_i32", t0, sHH, 40960, scc=False), vop("v_lshlrev_b32", tmp2, 8, i16), vop("v_add_u32", tmp2, t0, tmp2)]
    for ds in range(4): b += [vop("v_xor_b32", vKA[ds], ds * 64, tmp), vop("v_add_u32", vKA[ds], tmp2, vKA[ds])]
    b += [vop("v_bfe_u32", r_, lane, 2, 2), vop("v_and_b32", c_, 3, lane), salu("s_add_u32", t0, t0, RING(2)),
          vop("v_lshl_add_u32", tmp, g, 2, r_), vop("v_lshlrev_b32", tmp, 8, tmp), vop("v_lshl_add_u32", tmp, c_, 3, tmp), vop("v_add_u32", tmp, t0, tmp),
          vop("v_and_b32", g, 1, g), vop("v_lshl_add_u32", g, g, 2, r_), vop("v_lshlrev_b32", g, 5, g)]
    for dt in range(8): b += [vop("v_xor_b32", vVA[dt], dt * 32, g), vop("v_add_u32", vVA[dt], tmp, vVA[dt])]
    for t in range(7):
        for r in NEGM(t): b.append(vop("v_mov_b32", [r], 0))

def at_ins(key, i):
    k = key[0]
    if not 0 <= i <= 31: return None
    if k in 'ECA':
        t = int(key[1]); j = int(key[2]); n = 7 * i + t
        s = SB(n & 1)
        if k == 'E': return [trans("v_exp_f32", s[j:j+1], s[j:j+1])]
        if k == 'A': return [vop("v_add_f32", vL[t], vL[t], s[j:j+1])]
        return [vop("v_cvt_pk_bf16_f32", PB(n & 1)[j:j+1], s[2*j:2*j+1], s[2*j+1:2*j+2])]
    if k == 'V':
        dt, h = int(key[1]), int(key[2])
        return [dsr("ds_read_b64_tr_b16", VF(dt)[2*h:2*h+2], vVA[dt], (i & 3) * 8192 + h * 4096)]
    if k == 'K':
        if i + 1 > 31: return None
        f = int(key[1])
        return [dsr("ds_read_b128", KF(f), vKA[f & 3], ((i + 1) & 3) * 8192 + (f >> 2) * 4096)]
    if k == 'W': return None if i + 1 > 31 else [waitvm(('KV', i + 1))]
    if k == 'B': return None if i + 1 > 31 else [bar()]
    if i + 4 > 31: return None
    if k == 'M': return [salu("s_add_u32", M0, (sMK, sMV)[int(key[1])], (i & 3) * 8192)]
    if k == 'G':
        half, pp = int(key[1]), int(key[2])
        return [dma((vKD, vVD)[half][pp & 1], (SRD_K, SRD_V)[half], sKV, pp * 1024, CFG['kv_flags'], tag=('KV', i + 4))]
    if k == 'U': return [salu("s_add_u32", sKV, sKV, 8192)]
    if k == 'Y': return [salu("s_and_b32", sKV, sKV, 0x3ffff)]
    raise KeyError(key)

def at_mfma(G):
    n, j = divmod(G, 16)
    if j < 8:
        m = n - 1
        if not 0 <= m < 224: return None
        i, t = divmod(m, 7)
        return mfma(OT(t, j), VF(j), PB(m & 1), 0 if i == 0 else OT(t, j))
    m = n + 1
    if not 0 <= m < 224: return None
    i, t = divmod(m, 7)
    kt, ds = divmod(j - 8, 4)
    d = SB(m & 1)[4*kt:4*kt+4]
    return mfma(d, KF(j - 8), QF(t, ds), NEGM(t) if ds == 0 else d)

def at_range(b, g0, g1, base_step, pat):
    for G in range(g0, g1):
        m = at_mfma(G)
        if m is not None: b.append(m)
        i, rel = divmod(G, atpat.STEP)
        for key, d in pat[rel]:
            ins = at_ins(key, i + d)
            if ins is None: continue
            for x in ins:
                if x.tag: x.tag = (x.tag[0], x.tag[1] - base_step)
                if x.need: x.need = [(n, o - base_step) for n, o in x.need]
                b.append(x)

def attention(p, name):
    pat, pos, over = atpat.parse()
    b = p.block("k1_at_entry")
    b.append(label(f"L_{name}_at"))
    for t in range(7): b.append(vop("v_mov_b32", vL[t], 0))
    b += [waitvm(('KV', 0)), bar()]
    for f in range(8): b.append(dsr("ds_read_b128", KF(f), vKA[f & 3], (f >> 2) * 4096))
    b.append(smov(sCNT, 7))
    stamp(b, 3)
    at_range(b, -8, 120, 0, pat)
    b = p.block("k1_at_loop")
    b.append(label(f"L_{name}_atl"))
    at_range(b, 120, 120 + 448, 0, pat)
    b += [salu("s_sub_u32", sCNT, sCNT, 1), scmp("s_cmp_lg_u32", sCNT, 0), br("s_cbranch_scc1", f"L_{name}_atl")]
    b = p.block("k1_at_tail")
    at_range(b, 120 + 448 * 7, 32 * 112 + 8, 0, pat)
    stamp(b, 4)

def lane_reduce(b, regs, tmps, opname):
    for sw in ("v_permlane16_swap_b32", "v_permlane32_swap_b32"):
        for r, t in zip(regs, tmps): b.append(vop("v_mov_b32", t, r))
        for r, t in zip(regs, tmps): b.append(perm(sw, r, t))
        for r, t in zip(regs, tmps): b.append(vop(opname, r, r, t))

def check_and_store(p, name):
    b = p.block("k1_check")
    tm = [V(32 + 2 * t) for t in range(7)]
    lane_reduce(b, vL, tm, "v_add_f32")
    lo, hi, bad = sT[0], sT[1], S(64, 2)
    b += [smov(lo, hex(f2u(2.0 ** -32))), smov(hi, hex(f2u(2.0 ** 32))), raw("s_mov_b64 s[64:65], 0", 'salu', w=bad)]
    for t in range(7):
        b += [vop("v_cmp_nle_f32", 'vcc', lo, vL[t]), raw("s_or_b64 s[64:65], s[64:65], vcc", 'salu', w=bad + [('scc', 0)], r=bad + [('vcc', 0)]),
              vop("v_cmp_nge_f32", 'vcc', hi, vL[t]), raw("s_or_b64 s[64:65], s[64:65], vcc", 'salu', w=bad + [('scc', 0)], r=bad + [('vcc', 0)])]
    b += [salu("s_or_b32", sT[0], S(64), S(65)), salu("s_lshl_b32", sT[1], sWAVE, 2), salu("s_add_u32", sT[1], sT[1], RING(0) + 32768),
          vop("v_mov_b32", V(48), sT[1]), vop("v_mov_b32", V(49), sT[0]), vop("v_mov_b32", V(50), RING(0) + 32768),
          dsw("ds_write_b32", V(48), V(49), 0), waitlgkm0(), bar(), dsr("ds_read_b128", V(52, 4), V(50), 0)]
    for t in range(7): b.append(trans("v_rcp_f32", tm[t], vL[t]))
    b += [vop("v_or_b32", V(52), V(52), V(53)), vop("v_or3_b32", V(52), V(52), V(54), V(55)), vop("v_readfirstlane_b32", sT[0], V(52)),
          scmp("s_cmp_eq_u32", sT[0], 0), br("s_cbranch_scc1", f"L_{name}_store"),
          scmp("s_cmp_eq_u32", sPASS, 0), br("s_cbranch_scc1", f"L_{name}_maxpass")]
    b = p.block("k1_store")
    b.append(label(f"L_{name}_store"))
    voff = V(1)
    b += [vop("v_and_b32", voff, 63, V(0)), vop("v_lshlrev_b32", voff, 4, voff)]
    for t in range(7):
        rc = V(32 + 2 * t, 2)
        if t < 5: R = V(96 + 32 * t, 32)
        else:
            R = V(48, 32)
            for n in range(32): b.append(vop("v_accvgpr_read_b32", R[n:n+1], A(32 * (t - 5) + n)))
        for n in range(0, 32, 2): b.append(vop("v_pk_mul_f32", R[n:n+2], R[n:n+2], rc, extra="op_sel_hi:[1,0]"))
        for m in range(4):
            r = R[8*m:8*m+8]
            for n in range(4): b.append(vop("v_cvt_pk_bf16_f32", r[n:n+1], r[2*n:2*n+1], r[2*n+1:2*n+2]))
            off = m * 7168 + t * 1024
            b.append(smov(sT[m % 2], off & ~4095))
            b.append(vst("buffer_store_dwordx4", r[0:4], voff, SRD_O, sT[m % 2], off & 4095, CFG['o_flags']))
    stamp(b, 5)
    if CFG['stamps']:
        b.append(waitall())
        stamp(b, 6)
        b += [waitlgkm0(), raw("s_load_dwordx2 s[40:41], s[0:1], 96", w=S(40, 2)), waitlgkm0(),
              salu("s_add_u32", S(40), S(40), "0x4000000"), Ins("s_addc_u32 s41, s41, 0", 'salu', w=S(41), r=S(41)),
              smov(S(42), "0x100000"), smov(S(43), "0x20000"),
              salu("s_lshl_b32", sT[0], S(2), 2), salu("s_add_u32", sT[0], sT[0], sWAVE), salu("s_lshl_b32", sT[0], sT[0], 6)]
        for n in range(16): b += [vop("v_mov_b32", V(8 + n), S(80 + n))]
        b += [vop("v_mov_b32", V(2), 0), raw("s_mov_b64 exec, 1", 'salu', w=[('exec', 0)])]
        for n in range(4): b.append(vst("buffer_store_dwordx4", V(8 + 4 * n, 4), V(2), S(40, 4), sT[0], 16 * n))
    b += [label(f"L_{name}_end"), raw("s_endpgm")]

def maxpass(p, name):
    b = p.block("k1_max_pre")
    b.append(label(f"L_{name}_maxpass"))
    b += [smov(sPASS, 1), smov(sKV, 0), smov(sCNT, 32), bar()]
    for t in range(7): b.append(vop("v_mov_b32", vL[t], "0xff800000"))
    b = p.block("k1_max_loop")
    b.append(label(f"L_{name}_maxl"))
    b.append(salu("s_add_u32", M0, sMK, 0))
    for pp in range(4): b.append(dma(vKD[pp & 1], SRD_K, sKV, pp * 1024, CFG['kv_flags']))
    b += [salu("s_add_u32", sKV, sKV, 8192), waitall(), bar()]
    for f in range(8): b.append(dsr("ds_read_b128", KF(f), vKA[f & 3], (f >> 2) * 4096))
    b += [waitlgkm0(), bar()]
    for t in range(7):
        s = SB(t & 1)
        for kt in range(2):
            for ds in range(4):
                d = s[4*kt:4*kt+4]
                b.append(mfma(d, KF(4 * kt + ds), QF(t, ds), 0 if ds == 0 else d))
        for n in range(0, 8, 2): b.append(vop("v_max3_f32", vL[t], vL[t], s[n:n+1], s[n+1:n+2]))
    b += [salu("s_sub_u32", sCNT, sCNT, 1), scmp("s_cmp_lg_u32", sCNT, 0), br("s_cbranch_scc1", f"L_{name}_maxl")]
    b = p.block("k1_max_post")
    lane_reduce(b, vL, [V(32 + t) for t in range(7)], "v_max_f32")
    for t in range(7):
        for r in NEGM(t): b.append(vop("v_sub_f32", [r], 0, vL[t]))
    b.append(smov(sKV, sROT))
    for tile in range(4):
        for c, ins in kv_load_ops(tile, tile): b.append(ins)
    b.append(br("s_branch", f"L_{name}_at"))

def build(name="attn_kernel"):
    p = Program()
    prologue(p, name); qproj(p, name); attention(p, name); check_and_store(p, name); maxpass(p, name)
    main = [("k1_pro", {})] + [("k1_qp_loop", {'W': 4 * k, 'X': 2 * k}) for k in range(6)] + [("k1_qp_tail", {})]
    at = [("k1_at_entry", {})] + [("k1_at_loop", {'KV': 4 * k}) for k in range(7)] + [("k1_at_tail", {})] + [("k1_check", {})]
    fb = [("k1_max_pre", {})] + [("k1_max_loop", {})] * 2 + [("k1_max_post", {})]
    traces = [main + at + [("k1_store", {})], main + at + fb + at + [("k1_store", {})]]
    for tr in traces: p.insert_waits(tr)
    n = 0
    for tr in traces: n += p.fix_hazards(tr, verbose=CFG.get('verbose'))
    return p, n
if __name__ == "__main__":
    CFG['verbose'] = True
    p, n = build()
    print("nops", n)
    open("k1.txt", "w").write(p.text())
```

```python
from core import *
from k1 import srd, vop, f2u
CFG = dict(o_flags="", w_flags="", out_flags="", stamps=False)
SRD_O, SRD_W, SRD_C = S(4, 4), S(8, 4), S(12, 4)
sWAVE, sO, sW, sMW, sCNT = S(24), S(25), S(26), S(27), S(28)
sT = [S(62 + i) for i in range(10)]
M0 = 'm0'
vWA = [V(1 + i) for i in range(8)]
vWD = [V(9 + i) for i in range(8)]
vOD = [V(17), V(18)]
vR = [V(19 + i) for i in range(4)]
vC = V(23)
ACC = lambda nt, qt: V(32 + (nt * 7 + qt) * 4, 4)
FA = lambda nt: A(4 * nt, 4)
FB = lambda buf, qt: A(32 + 28 * buf + 4 * qt, 4)
WAVE_LDS = 40960

def stamp(b, n):
    if CFG['stamps']: b += [raw("s_memtime s[98:99]"), raw("s_memrealtime s[100:101]"), waitlgkm0(), smov(S(80 + n), S(100)), smov(S(88 + n), S(98))]

def ld_o(ks, tag):
    o = []
    for qt in range(7):
        o.append(('G', vld("buffer_load_dwordx4", FB(ks & 3, qt), vOD[qt >> 2], SRD_O, sO, (qt & 3) * 1024, CFG['o_flags'], tag=('O', tag))))
    o.append(('S', salu("s_add_u32", sO, sO, 7168)))
    return o
def ld_w(ks, tag):
    o = []
    for pc in range(8):
        if pc % 4 == 0: o.append(('S', salu("s_add_u32", M0, sMW, (ks & 3) * 8192 + (pc >> 2) * 4096)))
        o.append(('G', dma(vWD[pc], SRD_W, sW, (pc & 3) * 1024, CFG['w_flags'], tag=('W', tag))))
    o.append(('S', salu("s_add_u32", sW, sW, 65536)))
    return o

def prologue(p, name):
    b = p.block("k2_pro")
    b += [scmp("s_cmp_ge_u32", S(2), 256), br("s_cbranch_scc1", f"L_{name}_end")]
    stamp(b, 0)
    b += [raw("s_load_dwordx2 s[36:37], s[0:1], 32", w=S(36, 2)), raw("s_load_dwordx2 s[38:39], s[0:1], 72", w=S(38, 2)),
          raw("s_load_dwordx2 s[40:41], s[0:1], 80", w=S(40, 2)), raw("s_load_dwordx2 s[42:43], s[0:1], 96", w=S(42, 2))]
    lane, i16, g, r_, c_, tmp, tmp2 = V(24), V(25), V(26), V(27), V(28), V(29), V(30)
    b += [vop("v_lshrrev_b32", tmp, 6, V(0)), vop("v_and_b32", lane, 63, V(0)), vop("v_readfirstlane_b32", sWAVE, tmp),
          vop("v_and_b32", i16, 15, lane), vop("v_lshrrev_b32", g, 4, lane)]
    x_, j_, blk, bb, rho, ct, t0, t1, t2 = sT[:9]
    b += [salu("s_and_b32", x_, S(2), 7), salu("s_lshr_b32", j_, S(2), 3), salu("s_lshr_b32", blk, x_, 2),
          salu("s_and_b32", bb, x_, 1), salu("s_lshl_b32", bb, bb, 2), salu("s_and_b32", t0, j_, 3), salu("s_add_u32", bb, bb, t0),
          salu("s_bfe_u32", rho, j_, "0x10002"),
          salu("s_bfe_u32", ct, x_, "0x10001"), salu("s_lshl_b32", ct, ct, 2), salu("s_lshr_b32", t0, j_, 3), salu("s_add_u32", ct, ct, t0),
          salu("s_mul_i32", sMW, sWAVE, WAVE_LDS, scc=False)]
    b += [vop("v_lshlrev_b32", tmp, 11, g), vop("v_lshlrev_b32", tmp2, 1, g), vop("v_xor_b32", tmp2, tmp2, i16), vop("v_lshlrev_b32", tmp2, 4, tmp2),
          vop("v_xor_b32", V(31), 128, tmp2)]
    for pc in range(8):
        b += [vop("v_add_u32", vWD[pc], tmp, tmp2 if pc % 2 == 0 else V(31)), vop("v_add_u32", vWD[pc], pc * 8192 - (pc & 3) * 1024, vWD[pc])]
    b += [vop("v_lshlrev_b32", vOD[0], 4, lane), vop("v_add_u32", vOD[1], 4096, vOD[0])]
    b.append(waitlgkm0())
    b.append(scmp("s_cmp_eq_u32", blk, 0))
    for hl in range(2):
        b.append(Ins(f"s_cselect_b32 s{36+hl}, s{36+hl}, s{38+hl}", 'salu', w=S(36+hl), r=S(36+hl)+S(38+hl)+[('scc',0)]))
    b += [salu("s_lshl_b32", t0, sWAVE, 21), salu("s_lshl_b32", t1, ct, 8), salu("s_add_u32", t0, t0, t1), salu("s_sub_u32", t2, 2097152, t1)]
    if CFG.get('same_op'): b.append(salu("s_lshl_b32", t0, sWAVE, 21 if CFG['same_op'] == 1 else 0))
    srd(b, SRD_W, S(36, 2), t0, t2)
    b += [salu("s_lshl_b32", t0, blk, 3), salu("s_add_u32", t0, t0, bb), salu("s_lshl_b32", t0, t0, 1), salu("s_add_u32", t0, t0, rho),
          salu("s_lshl_b32", t0, t0, 2), salu("s_add_u32", t0, t0, sWAVE), salu("s_mul_i32", t0, t0, 229376, scc=False)]
    if CFG.get('same_op'): b.append(salu("s_mul_i32", t0, sWAVE, 229376, scc=False))
    srd(b, SRD_O, S(42, 2), t0, 229376)
    b += [smov(sO, 0), smov(sW, 0)]
    for c, ins in ld_w(0, 0) + ld_o(0, 0) + ld_w(1, 1) + ld_o(1, 1) + ld_w(2, 2) + ld_o(2, 2) + ld_w(3, 3): b.append(ins)
    b += [salu("s_mul_i32", t0, bb, 224, scc=False), salu("s_mul_i32", t1, rho, 112, scc=False), salu("s_add_u32", t0, t0, t1), salu("s_lshl_b32", t0, t0, 12),
          salu("s_lshl_b32", t1, blk, 11), salu("s_add_u32", t0, t0, t1), salu("s_lshl_b32", t1, ct, 8), salu("s_add_u32", t0, t0, t1)]
    srd(b, SRD_C, S(40, 2), t0, 111 * 4096 + 256)
    b += [vop("v_and_b32", tmp, 1, g), vop("v_lshlrev_b32", tmp, 1, tmp), vop("v_lshrrev_b32", tmp2, 1, g), vop("v_or_b32", tmp, tmp, tmp2),
          vop("v_lshlrev_b32", tmp, 4, tmp), vop("v_lshl_add_u32", tmp, i16, 12, tmp), salu("s_lshl_b32", t0, sWAVE, 6), vop("v_add_u32", vC, t0, tmp)]
    b += [vop("v_bfe_u32", r_, lane, 2, 2), vop("v_and_b32", c_, 3, lane),
          vop("v_lshl_add_u32", tmp, g, 2, r_), vop("v_lshlrev_b32", tmp, 8, tmp), vop("v_lshl_add_u32", tmp, c_, 3, tmp), vop("v_add_u32", tmp, sMW, tmp),
          vop("v_and_b32", g, 1, g), vop("v_lshl_add_u32", g, g, 2, r_), vop("v_lshlrev_b32", g, 5, g)]
    for nt in range(8): b += [vop("v_xor_b32", vWA[nt], nt * 32, g), vop("v_add_u32", vWA[nt], tmp, vWA[nt])]
    for n, xo in enumerate((0, 1, 2)):
        b += [salu("s_xor_b32", t0, sWAVE, xo), salu("s_mul_i32", t0, t0, 28672, scc=False), vop("v_add_u32", vR[n], t0, vOD[0])]
    for r in range(32, 256): b.append(vop("v_mov_b32", V(r), 0))
    b.append(waitvm(('W', 0)))
    for nt in range(8):
        for h in range(2): b.append(dsr("ds_read_b64_tr_b16", FA(nt)[2*h:2*h+2], vWA[nt], h * 4096))
    b.append(smov(sCNT, 7))
    stamp(b, 1)
    if CFG.get('stagger'):
        for w in range(1, 4):
            b += [scmp("s_cmp_lt_u32", sWAVE, w), br("s_cbranch_scc1", f"L_{name}_stg"), raw(f"s_sleep {CFG['stagger']}")]
        b.append(label(f"L_{name}_stg"))

def step(b, s, srel):
    gaps = [[] for _ in range(56)]
    if s + 1 <= 31:
        gaps[5].append(waitvm(('W', srel + 1)))
        for nt in range(8 if not CFG.get('no_lds') else 0):
            for h in range(2): gaps[7 * nt + 6].append(dsr("ds_read_b64_tr_b16", FA(nt)[2*h:2*h+2], vWA[nt], ((s + 1) & 3) * 8192 + h * 4096))
    seq = []
    if s + 3 <= 31 and not CFG.get('no_o'): seq += ld_o(s + 3, srel + 3)
    if s + 4 <= 31 and not CFG.get('no_w'): seq += ld_w(s + 4, srel + 4)
    if CFG.get('o_as_dma'):
        seq = [(c, i) if i.kind != 'vld' else (c, dma(vOD[0], SRD_O, sO, 0, "", tag=i.tag)) for c, i in seq]
    ng = sum(c == 'G' for c, _ in seq)
    gm = CFG.get('gmode')
    if gm:
        free = [g for g in range(7, 56) if g % 7 != 6]
        gpos = [free[(n // gm[1]) * gm[0]] for n in range(ng)]
    elif CFG.get('spread', 1):
        free = [g for g in range(0, 56) if g % 7 != 6 and g not in (4, 5)]
        gpos = [free[(n * len(free)) // max(1, ng) + 1] for n in range(ng)]
    else:
        free = [g for g in range(7, 56) if g % 7 != 6]
        stride = max(1, min(3, (len(free) - 1) // max(1, ng)))
        gpos = [free[n * stride] for n in range(ng)]
    n = 0
    for c, ins in seq:
        if c == 'G':
            gaps[gpos[n]].append(ins); n += 1
        else:
            prev = gpos[n - 1] if n else -1
            nxt_ = gpos[n] if n < ng else 56
            if prev + 1 < nxt_: gaps[nxt_ - 1 if nxt_ < 56 else prev + 1].insert(0, ins)
            else: gaps[prev].append(ins)
    if s + 4 <= 31:
        gaps[4].append(waitlgkm0())
    for j in range(56):
        nt, qt = divmod(j, 7)
        b.append(mfma(ACC(nt, qt), FA(nt), FB(s & 3, qt), ACC(nt, qt)))
        b += gaps[j]

def reduce_store(p, name):
    for w in range(4):
        b = p.block(f"k2_red{w}")
        b.append(label(f"L_{name}_red{w}"))
        def tiles(d): return [ACC(nt, qt) for nt in (2 * d, 2 * d + 1) for qt in range(7)]
        own = tiles(w)
        b += [waitlgkm0(), bar()]
        for n, t in enumerate(tiles(w ^ 1)): b.append(dsw("ds_write_b128", vR[0], t, n * 1024))
        for n, t in enumerate(tiles(w ^ 2)): b.append(dsw("ds_write_b128", vR[0], t, 14336 + n * 1024))
        b += [waitlgkm0(), bar()]
        t1, t2 = tiles(w ^ 1), tiles(w ^ 2)
        for n in range(14): b.append(dsr("ds_read_b128", t1[n], vR[1], n * 1024))
        for n in range(14): b.append(dsr("ds_read_b128", t2[n], vR[2], 14336 + n * 1024))
        for n in range(14):
            for r in range(4): b.append(vop("v_add_f32", own[n][r:r+1], own[n][r:r+1], t1[n][r:r+1]))
        for n, t in enumerate(tiles(w ^ 3)): b.append(dsw("ds_write_b128", vR[1], t, n * 1024))
        for n in range(14):
            for r in range(4): b.append(vop("v_add_f32", own[n][r:r+1], own[n][r:r+1], t2[n][r:r+1]))
        b += [waitlgkm0(), bar()]
        for n in range(14): b.append(dsr("ds_read_b128", t1[n], vR[2], n * 1024))
        for qt in range(7):
            for n in (qt, 7 + qt):
                for r in range(4): b.append(vop("v_add_f32", own[n][r:r+1], own[n][r:r+1], t1[n][r:r+1]))
        for qt in range(7):
            a0, a1 = own[qt], own[7 + qt]
            o = t2[qt]
            b += [vop("v_cvt_pk_bf16_f32", o[0:1], a0[0:1], a0[1:2]), vop("v_cvt_pk_bf16_f32", o[1:2], a0[2:3], a0[3:4]),
                  vop("v_cvt_pk_bf16_f32", o[2:3], a1[0:1], a1[1:2]), vop("v_cvt_pk_bf16_f32", o[3:4], a1[2:3], a1[3:4])]
        for qt in range(7):
            o = t2[qt]
            b += [perm("v_permlane16_swap_b32", o[0:1], o[2:3]), perm("v_permlane16_swap_b32", o[1:2], o[3:4])]
        for qt in range(7):
            b += [smov(sT[qt % 2], qt * 65536), vst("buffer_store_dwordx4", t2[qt], vC, SRD_C, sT[qt % 2], 0, CFG['out_flags'])]
        b.append(br("s_branch", f"L_{name}_fin"))
    b = p.block("k2_fin")
    b.append(label(f"L_{name}_fin"))
    stamp(b, 3)
    if CFG['stamps']:
        b.append(waitall())
        stamp(b, 4)
        b += [waitlgkm0(), salu("s_add_u32", S(40), S(42), "0x4100000"), Ins("s_addc_u32 s41, s43, 0", 'salu', w=S(41), r=S(43)),
              smov(S(42), "0x100000"), smov(S(43), "0x20000"),
              salu("s_lshl_b32", sT[0], S(2), 2), salu("s_add_u32", sT[0], sT[0], sWAVE), salu("s_lshl_b32", sT[0], sT[0], 6)]
        for n in range(16): b += [vop("v_mov_b32", V(8 + n), S(80 + n))]
        b += [vop("v_mov_b32", V(2), 0), raw("s_mov_b64 exec, 1", 'salu', w=[('exec', 0)])]
        for n in range(4): b.append(vst("buffer_store_dwordx4", V(8 + 4 * n, 4), V(2), S(40, 4), sT[0], 16 * n))
    b += [label(f"L_{name}_end"), raw("s_endpgm")]

def build(name="oproj_kernel"):
    p = Program()
    prologue(p, name)
    b = p.block("k2_loop")
    b.append(label(f"L_{name}_l"))
    for s in range(4): step(b, s, s)
    b += [salu("s_sub_u32", sCNT, sCNT, 1), scmp("s_cmp_lg_u32", sCNT, 0), br("s_cbranch_scc1", f"L_{name}_l")]
    b = p.block("k2_tail")
    for s in range(28, 32): step(b, s, s)
    stamp(b, 2)
    for w in range(1, 4): b += [scmp("s_cmp_eq_u32", sWAVE, w), br("s_cbranch_scc1", f"L_{name}_red{w}")]
    reduce_store(p, name)
    n = 0
    traces = [[("k2_pro", {})] + [("k2_loop", {'W': 4 * k, 'O': 4 * k}) for k in range(7)] + [("k2_tail", {}), (f"k2_red{w}", {}), ("k2_fin", {})] for w in range(4)]
    for tr in traces: p.insert_waits(tr)
    for tr in traces: n += p.fix_hazards(tr, verbose=CFG.get('verbose'))
    return p, n
if __name__ == "__main__":
    CFG['verbose'] = True
    p, n = build()
    print("nops", n)
    open("k2.txt", "w").write(p.text())
```

```python
from core import *
import atpat, struct

def f2u(x): return struct.unpack("<I", struct.pack("<f", x))[0]
RING = lambda r: r * 40960
CFG = dict(kv_flags="nt", x_flags="", w_flags="", o_flags="", stamps=False)

SRD_X, SRD_W, SRD_K, SRD_V, SRD_O = S(4, 4), S(8, 4), S(12, 4), S(16, 4), S(20, 4)
sWAVE, sHH, sRHO = S(24), S(25), S(26)
sX, sW, sKV = S(27), S(28), S(29)
sMX, sMW, sMK, sMV = S(30), S(31), S(32), S(33)
sCNT, sPASS = S(34), S(35)
sROT = S(76)
sSCALE = S(60, 2)
sT = [S(62 + i) for i in range(10)]
M0 = 'm0'
vWA = [V(1 + i) for i in range(8)]
vXA = [V(9), V(10)]
vKD = [V(13), V(14)]; vVD = [V(15), V(16)]
vXD = [V(17 + i) for i in range(7)]
vWD = [V(24 + i) for i in range(4)]
vT = [V(28 + i) for i in range(4)]
ACC = lambda dt, qt: V(32 + (qt * 8 + dt) * 4, 4)
QA = lambda dt: A(176 + 4 * dt, 4)
QB = lambda buf, qt: A((208 if buf == 0 else 0) + 4 * qt, 4)
vKA = [V(1 + i) for i in range(4)]
vVA = [V(5 + i) for i in range(8)]
vL = [V(17 + i) for i in range(7)]
PB = lambda buf: V(24 + 4 * buf, 4)
SB = lambda buf: V(32 + 8 * buf, 8)
NEGM = lambda t: V(48 + 4 * t, 4)
def OT(t, dt): return V(96 + 32 * t + 4 * dt, 4) if t < 5 else A(32 * (t - 5) + 4 * dt, 4)
QF = lambda t, ds: A(64 + 16 * t + 4 * ds, 4)
KF = lambda f: A(176 + 4 * f, 4)
VF = lambda dt: A(208 + 4 * dt, 4)

def vop(name, d, *s, **k): return valu(name, d, *s, **k)

def srd(b, dst, ptr, off_lo, size):
    b.append(salu("s_add_u32", [dst[0]], [ptr[0]], off_lo))
    b.append(Ins(f"s_addc_u32 {rt([dst[1]])}, {rt([ptr[1]])}, 0", 'salu', w=[dst[1], ('scc', 0)], r=[ptr[1], ('scc', 0)]))
    b.append(smov([dst[2]], size))
    b.append(smov([dst[3]], "0x20000"))

def stamp(b, n):
    if CFG['stamps']:
        b += [raw("s_memtime s[98:99]"), raw("s_memrealtime s[100:101]"), waitlgkm0(), smov(S(80 + n), S(100)), smov(S(88 + n), S(98))]

def prologue(p, name):
    b = p.block("k1_pro")
    P = lambda i: S(36 + 2 * i, 2)
    b += [scmp("s_cmp_ge_u32", S(2), 256), br("s_cbranch_scc1", f"L_{name}_end")]
    stamp(b, 0)
    b += [raw("s_load_dwordx16 s[36:51], s[0:1], 0", w=S(36, 16)), raw("s_load_dwordx4 s[52:55], s[0:1], 64", w=S(52, 4)),
          raw("s_load_dwordx2 s[58:59], s[0:1], 96", w=S(58, 2))]
    lane, i16, g, r_, c_ = V(28), V(29), V(30), V(31), V(11)
    b += [vop("v_lshrrev_b32", V(12), 6, V(0)), vop("v_and_b32", lane, 63, V(0)),
          vop("v_readfirstlane_b32", sWAVE, V(12)),
          vop("v_and_b32", i16, 15, lane), vop("v_lshrrev_b32", g, 4, lane)]
    b += [salu("s_lshr_b32", sHH, sWAVE, 1), salu("s_and_b32", sRHO, sWAVE, 1)]
    x_, j_, blk, bb, hp = sT[0], sT[1], sT[2], sT[3], sT[4]
    b += [salu("s_and_b32", x_, S(2), 7), salu("s_lshr_b32", j_, S(2), 3), salu("s_lshr_b32", blk, x_, 2),
          salu("s_and_b32", bb, x_, 1), salu("s_lshl_b32", bb, bb, 2), salu("s_and_b32", sT[5], j_, 3), salu("s_add_u32", bb, bb, sT[5]),
          salu("s_bfe_u32", hp, x_, "0x10001"), salu("s_lshl_b32", hp, hp, 3), salu("s_lshr_b32", sT[5], j_, 2), salu("s_add_u32", hp, hp, sT[5])]
    t0, t1, t2, t3 = sT[5], sT[6], sT[7], sT[8]
    b += [salu("s_mul_i32", t0, sHH, 40960, scc=False),
          salu("s_lshl_b32", t1, sRHO, 12),
          salu("s_add_u32", sMK, t0, t1), salu("s_add_u32", sMV, sMK, RING(2)), salu("s_add_u32", sMW, sMV, 8192),
          salu("s_mul_i32", t2, sRHO, 7168, scc=False), salu("s_add_u32", sMX, t0, t2), salu("s_add_u32", sMX, sMX, 8192)]
    tmp, tmp2 = V(12), V(1)
    b += [vop("v_lshrrev_b32", tmp, 3, lane)]
    b += [salu("s_mul_i32", t2, sHH, 112, scc=False), salu("s_mul_i32", t3, sRHO, 56, scc=False), salu("s_add_u32", t2, t2, t3)]
    b += [vop("v_add_u32", tmp, t2, tmp), vop("v_lshlrev_b32", tmp, 11, tmp)]
    b += [vop("v_and_b32", tmp2, 7, lane), vop("v_xor_b32", tmp2, tmp2, g)]
    b += [salu("s_lshl_b32", t3, sRHO, 2)]
    b += [vop("v_xor_b32", tmp2, t3, tmp2), vop("v_lshlrev_b32", V(2), 4, tmp2), vop("v_xor_b32", V(3), 64, V(2))]
    for pp in range(7):
        imm = (pp & 3) * 1024
        b += [vop("v_add_u32", vXD[pp], tmp, V(2) if pp % 2 == 0 else V(3)), vop("v_add_u32", vXD[pp], pp * 16384 - imm, vXD[pp])]
    b += [salu("s_lshl_b32", t3, sRHO, 4), vop("v_add_u32", tmp, t3, g), vop("v_lshlrev_b32", tmp, 13, tmp),
          salu("s_lshl_b32", t3, sHH, 8), vop("v_add_u32", tmp, t3, tmp),
          vop("v_lshlrev_b32", tmp2, 1, g), vop("v_xor_b32", tmp2, tmp2, i16), vop("v_lshlrev_b32", V(2), 4, tmp2), vop("v_xor_b32", V(3), 128, V(2))]
    for pp in range(4):
        b += [vop("v_add_u32", vWD[pp], tmp, V(2) if pp < 2 else V(3)), vop("v_add_u32", vWD[pp], pp * 32768 - pp * 1024, vWD[pp])]
    b += [vop("v_lshlrev_b32", tmp, 8, g), vop("v_add_u32", tmp, t1, tmp), vop("v_add_u32", vVD[0], tmp, V(2)), vop("v_add_u32", vVD[1], tmp, V(3))]
    b += [vop("v_and_b32", tmp2, 2, g), vop("v_lshlrev_b32", tmp2, 1, tmp2), vop("v_and_b32", V(2), 1, g), vop("v_or_b32", tmp2, tmp2, V(2)),
          vop("v_xor_b32", tmp2, tmp2, i16), vop("v_lshlrev_b32", V(2), 4, tmp2), vop("v_xor_b32", V(3), 128, V(2)),
          vop("v_add_u32", vKD[0], tmp, V(2)), vop("v_add_u32", vKD[1], tmp, V(3))]
    if CFG.get('kvsplit'):
        b += [scmp("s_cmp_eq_u32", sRHO, 0), Ins("s_cselect_b64 vcc, -1, 0", 'salu', w=[('vcc', 0)], r=[('scc', 0)])]
        for n in range(2):
            b += [vop("v_cndmask_b32", vKD[n], vVD[n], vKD[n], 'vcc'), vop("v_subrev_u32", vKD[n], t1, vKD[n]), vop("v_add_u32", vVD[n], 4096, vKD[n])]
        b += [salu("s_mul_i32", t2, sHH, 40960, scc=False), salu("s_mul_i32", t3, sRHO, RING(2), scc=False), salu("s_add_u32", sMK, t2, t3), salu("s_add_u32", sMV, sMK, 4096)]
    b.append(waitlgkm0())
    b.append(scmp("s_cmp_eq_u32", blk, 0))
    for i in range(4):
        for hl in range(2):
            b.append(Ins(f"s_cselect_b32 s{36+2*i+hl}, s{36+2*i+hl}, s{46+2*i+hl}", 'salu', w=S(36+2*i+hl), r=S(36+2*i+hl)+S(46+2*i+hl)+[('scc',0)]))
    b += [salu("s_mul_i32", t0, bb, 0 if CFG.get('same_xw') else 458752, scc=False)]; srd(b, SRD_X, P(0), t0, 458752)
    b += [salu("s_lshl_b32", t0, hp, 9)]
    if CFG.get('same_xw'): b.append(smov(t0, 0))
    b += [salu("s_sub_u32", t2, 8388608, t0)]; srd(b, SRD_W, P(3), t0, t2)
    b += [smov(sX, 0), smov(sW, 0)]
    rot = CFG.get('rot', 0)
    if rot == 0: b.append(smov(sROT, 0))
    elif rot == 'hh': b += [salu("s_lshl_b32", sROT, sHH, 17)]
    elif rot == 'blk': b += [salu("s_lshl_b32", sROT, blk, 17)]
    elif rot == 'mix': b += [salu("s_mul_i32", sROT, S(2), "0x9E3779B1", scc=False), salu("s_lshr_b32", sROT, sROT, 27), salu("s_lshl_b32", sROT, sROT, 13)]
    else: b += [salu("s_lshr_b32", sROT, S(2), rot[0]), salu("s_mul_i32", sROT, sROT, rot[1], scc=False), salu("s_and_b32", sROT, sROT, 31), salu("s_lshl_b32", sROT, sROT, 13)]
    b.append(smov(sKV, sROT))
    def ldx(pair):
        for pp in range(7):
            if pp % 4 == 0: b.append(salu("s_add_u32", M0, sMX, (pair & 1) * 18432 + (pp >> 2) * 4096))
            b.append(dma(vXD[pp], SRD_X, sX, (pp & 3) * 1024, CFG['x_flags'], tag=('X', pair)))
        b.append(salu("s_add_u32", sX, sX, 128))
    def ldw(ks):
        b.append(salu("s_add_u32", M0, sMW, (ks & 3) * 8192))
        for pp in range(4): b.append(dma(vWD[pp], SRD_W, sW, pp * 1024, CFG['w_flags'], tag=('W', ks)))
        b.append(salu("s_add_u32", sW, sW, 262144))
    ldx(0); ldw(0); ldw(1); ldx(1); ldw(2); ldw(3)
    b += [salu("s_lshl_b32", t0, bb, 5), salu("s_lshl_b32", t2, hp, 1), salu("s_add_u32", t0, t0, t2), salu("s_add_u32", t0, t0, sHH),
          salu("s_lshl_b32", t0, t0, 18)]
    if CFG.get('same_kv'): b.append(salu("s_lshl_b32", t0, sHH, 18))
    if CFG.get('kvsplit'):
        b.append(scmp("s_cmp_eq_u32", sRHO, 0))
        for hl in range(2):
            b.append(Ins(f"s_cselect_b32 s{38+hl}, s{38+hl}, s{40+hl}", 'salu', w=S(38+hl), r=S(38+hl)+S(40+hl)+[('scc',0)]))
            b.append(smov(S(40+hl), S(38+hl)))
    srd(b, SRD_K, P(1), t0, 262144); srd(b, SRD_V, P(2), t0, 262144)
    b += [salu("s_lshl_b32", t0, blk, 3), salu("s_add_u32", t0, t0, bb), salu("s_lshl_b32", t0, t0, 1), salu("s_add_u32", t0, t0, sRHO), salu("s_lshl_b32", t0, t0, 5),
          salu("s_lshl_b32", t2, hp, 1), salu("s_add_u32", t0, t0, t2), salu("s_add_u32", t0, t0, sHH), salu("s_mul_i32", t0, t0, 28672, scc=False)]
    srd(b, SRD_O, S(58, 2), t0, 28672)
    b += [smov(sPASS, 0), smov([sSCALE[0]], hex(f2u(1.4426950408889634 / 128 ** 0.5))), smov([sSCALE[1]], 0)]
    b += [vop("v_lshrrev_b32", tmp, 1, i16), vop("v_xor_b32", tmp, tmp, g), vop("v_lshlrev_b32", tmp, 4, tmp), vop("v_lshlrev_b32", tmp2, 7, i16),
          salu("s_mul_i32", t0, sRHO, 40960, scc=False), salu("s_add_u32", t0, t0, 8192),
          vop("v_add_u32", tmp2, t0, tmp2), vop("v_add_u32", vXA[0], tmp2, tmp), vop("v_xor_b32", tmp, 64, tmp), vop("v_add_u32", vXA[1], tmp2, tmp)]
    b += [vop("v_bfe_u32", r_, lane, 2, 2), vop("v_and_b32", c_, 3, lane),
          salu("s_mul_i32", t0, sHH, 40960, scc=False), salu("s_add_u32", t0, t0, RING(2) + 8192),
          vop("v_lshl_add_u32", tmp, g, 3, r_), vop("v_lshlrev_b32", tmp, 8, tmp), vop("v_lshl_add_u32", tmp, c_, 3, tmp), vop("v_add_u32", tmp, t0, tmp),
          vop("v_and_b32", g, 1, g), vop("v_lshl_add_u32", g, g, 2, r_), vop("v_lshlrev_b32", g, 5, g)]
    for dt in range(8):
        b += [vop("v_xor_b32", vWA[dt], dt * 32, g), vop("v_add_u32", vWA[dt], tmp, vWA[dt])]
    for r in range(32, 256): b.append(vop("v_mov_b32", V(r), 0))
    b += [waitvm(('X', 0), ('W', 0)), bar()]
    for dt in range(8):
        for h in range(2): b.append(dsr("ds_read_b64_tr_b16", QA(dt)[2*h:2*h+2], vWA[dt], h * 1024))
    for qt in range(7): b.append(dsr("ds_read_b128", QB(0, qt), vXA[0], qt * 2048))
    b.append(smov(sCNT, 6))
    stamp(b, 1)

def kv_load_ops(tile, tagoff):
    o = []
    for half, (sM, srd_, vd) in enumerate(((sMK, SRD_K, vKD), (sMV, SRD_V, vVD))):
        o.append(('S', salu("s_add_u32", M0, sM, (tile & 3) * 8192)))
        for pp in range(4): o.append(('G', dma(vd[pp & 1], srd_, sKV, pp * 1024, CFG['kv_flags'], tag=('KV', tagoff))))
    o.append(('S', salu("s_add_u32", sKV, sKV, 8192)))
    o.append(('S', salu("s_and_b32", sKV, sKV, 0x3ffff)))
    return o

def qp_step(b, s, srel, last_w, last_x, kv=()):
    gaps = [[] for _ in range(56)]
    nxt = s + 1 <= 31
    if nxt:
        w = waitvm(('W', srel + 1))
        if (s + 1) % 2 == 0: w.need.append(('X', (srel + 1) // 2))
        gaps[5] += [w, waitlgkm0()]
        gaps[6].append(bar())
        for dt in range(8):
            for h in range(2): gaps[7 * dt + 6].append(dsr("ds_read_b64_tr_b16", QA(dt)[2*h:2*h+2], vWA[dt], ((s + 1) & 3) * 8192 + h * 1024))
        pair, par = (s + 1) >> 1, (s + 1) & 1
        for qt, g in enumerate((7, 8, 9, 10, 11, 12, 14)):
            gaps[g].append(dsr("ds_read_b128", QB((s + 1) & 1, qt), vXA[par], (pair & 1) * 18432 + qt * 2048))
    elif kv:
        gaps[5].append(waitlgkm0()); gaps[6].append(bar())
    seq = []
    if s % 2 == 1 and (s + 3) // 2 <= last_x:
        pair = (s + 3) // 2
        for pp in range(7):
            if pp % 4 == 0: seq.append(('S', salu("s_add_u32", M0, sMX, (pair & 1) * 18432 + (pp >> 2) * 4096)))
            seq.append(('G', dma(vXD[pp], SRD_X, sX, (pp & 3) * 1024, CFG['x_flags'], tag=('X', (srel + 3) // 2))))
        seq.append(('S', salu("s_add_u32", sX, sX, 128)))
    if s + 4 <= last_w:
        seq.append(('S', salu("s_add_u32", M0, sMW, (s & 3) * 8192)))
        for pp in range(4): seq.append(('G', dma(vWD[pp], SRD_W, sW, pp * 1024, CFG['w_flags'], tag=('W', srel + 4))))
        seq.append(('S', salu("s_add_u32", sW, sW, 262144)))
    for t in kv: seq += kv_load_ops(t, t)
    free = [g for g in range(15, 56) if g % 7 != 6]
    ng = sum(c == 'G' for c, _ in seq)
    stride = max(1, min(3, (len(free) - 1) // max(1, ng)))
    gpos = [free[min(n * stride, len(free) - 1)] for n in range(ng)]
    assert len(set(gpos)) == ng
    n = 0
    for c, ins in seq:
        if c == 'G':
            gaps[gpos[n]].append(ins); n += 1
        else:
            prev = gpos[n - 1] if n else 13
            nxt_ = gpos[n] if n < ng else 56
            if prev + 1 < nxt_:
                gg = gaps[nxt_ - 1 if nxt_ < 56 else prev + 1]
                k_ = 0
                while k_ < len(gg) and gg[k_].kind == 'salu': k_ += 1
                gg.insert(k_, ins)
            else: gaps[prev].append(ins)
    for j in range(56):
        dt, qt = divmod(j, 7)
        b.append(mfma(ACC(dt, qt), QA(dt), QB(s & 1, qt), ACC(dt, qt)))
        b += gaps[j]

def qproj(p, name):
    b = p.block("k1_qp_loop")
    b.append(label(f"L_{name}_qp"))
    for s in range(4): qp_step(b, s, s, 31, 15)
    b += [salu("s_sub_u32", sCNT, sCNT, 1), scmp("s_cmp_lg_u32", sCNT, 0), br("s_cbranch_scc1", f"L_{name}_qp")]
    b = p.block("k1_qp_tail")
    kvs = {24: (0,), 29: (1, 2), 31: (3,)}
    for s in range(24, 32): qp_step(b, s, s, 31, 15, kv=kvs.get(s, ()))
    stamp(b, 2)
    for qt in range(7):
        units = []
        for ds in range(4):
            t0, t1 = ACC(2 * ds, qt), ACC(2 * ds + 1, qt)
            units.append((t0, t1))
        for t0, t1 in units:
            for t in (t0, t1):
                b += [vop("v_pk_mul_f32", t[0:2], t[0:2], sSCALE, extra="op_sel_hi:[1,0]"), vop("v_pk_mul_f32", t[2:4], t[2:4], sSCALE, extra="op_sel_hi:[1,0]")]
        for t0, t1 in units:
            for t in (t0, t1):
                b += [vop("v_cvt_pk_bf16_f32", t[0:1], t[0:1], t[1:2]), vop("v_cvt_pk_bf16_f32", t[1:2], t[2:3], t[3:4])]
        for t0, t1 in units:
            b += [perm("v_permlane16_swap_b32", t0[0:1], t1[0:1]), perm("v_permlane16_swap_b32", t0[1:2], t1[1:2])]
        for ds, (t0, t1) in enumerate(units):
            q = QF(qt, ds)
            for n, src in enumerate((t0[0:1], t0[1:2], t1[0:1], t1[1:2])): b.append(vop("v_accvgpr_write_b32", q[n:n+1], src))
    lane, i16, g, r_, c_, tmp, tmp2 = V(28), V(29), V(30), V(31), V(32), V(33), V(34)
    t0 = sT[0]
    b += [vop("v_and_b32", lane, 63, V(0)), vop("v_and_b32", i16, 15, lane), vop("v_lshrrev_b32", g, 4, lane),
          vop("v_and_b32", tmp, 1, g), vop("v_lshlrev_b32", tmp, 1, tmp), vop("v_lshrrev_b32", tmp2, 1, g), vop("v_or_b32", tmp, tmp, tmp2),
          vop("v_and_b32", tmp2, 1, i16), vop("v_xor_b32", tmp, tmp, tmp2), vop("v_and_b32", tmp2, 6, i16), vop("v_lshlrev_b32", tmp2, 1, tmp2),
          vop("v_xor_b32", tmp, tmp, tmp2), vop("v_lshlrev_b32", tmp, 4, tmp),
          salu("s_mul_i32", t0, sHH, 40960, scc=False), vop("v_lshlrev_b32", tmp2, 8, i16), vop("v_add_u32", tmp2, t0, tmp2)]
    for ds in range(4): b += [vop("v_xor_b32", vKA[ds], ds * 64, tmp), vop("v_add_u32", vKA[ds], tmp2, vKA[ds])]
    b += [vop("v_bfe_u32", r_, lane, 2, 2), vop("v_and_b32", c_, 3, lane), salu("s_add_u32", t0, t0, RING(2)),
          vop("v_lshl_add_u32", tmp, g, 2, r_), vop("v_lshlrev_b32", tmp, 8, tmp), vop("v_lshl_add_u32", tmp, c_, 3, tmp), vop("v_add_u32", tmp, t0, tmp),
          vop("v_and_b32", g, 1, g), vop("v_lshl_add_u32", g, g, 2, r_), vop("v_lshlrev_b32", g, 5, g)]
    for dt in range(8): b += [vop("v_xor_b32", vVA[dt], dt * 32, g), vop("v_add_u32", vVA[dt], tmp, vVA[dt])]
    for t in range(7):
        for r in NEGM(t): b.append(vop("v_mov_b32", [r], 0))

def at_ins(key, i):
    k = key[0]
    if not 0 <= i <= 31: return None
    if k in 'ECA':
        t = int(key[1]); j = int(key[2]); n = 7 * i + t
        s = SB(n & 1)
        if k == 'E': return [trans("v_exp_f32", s[j:j+1], s[j:j+1])]
        if k == 'A': return [vop("v_add_f32", vL[t], vL[t], s[j:j+1])]
        return [vop("v_cvt_pk_bf16_f32", PB(n & 1)[j:j+1], s[2*j:2*j+1], s[2*j+1:2*j+2])]
    if k == 'V':
        dt, h = int(key[1]), int(key[2])
        return [dsr("ds_read_b64_tr_b16", VF(dt)[2*h:2*h+2], vVA[dt], (i & 3) * 8192 + h * 4096)]
    if k == 'K':
        if i + 1 > 31: return None
        f = int(key[1])
        return [dsr("ds_read_b128", KF(f), vKA[f & 3], ((i + 1) & 3) * 8192 + (f >> 2) * 4096)]
    if k == 'W': return None if i + 1 > 31 else [waitvm(('KV', i + 1))]
    if k == 'B': return None if i + 1 > 31 else [bar()]
    if i + 4 > 31: return None
    if k == 'M': return [salu("s_add_u32", M0, (sMK, sMV)[int(key[1])], (i & 3) * 8192)]
    if k == 'G':
        half, pp = int(key[1]), int(key[2])
        return [dma((vKD, vVD)[half][pp & 1], (SRD_K, SRD_V)[half], sKV, pp * 1024, CFG['kv_flags'], tag=('KV', i + 4))]
    if k == 'U': return [salu("s_add_u32", sKV, sKV, 8192)]
    if k == 'Y': return [salu("s_and_b32", sKV, sKV, 0x3ffff)]
    raise KeyError(key)

def at_mfma(G):
    n, j = divmod(G, 16)
    if j < 8:
        m = n - 1
        if not 0 <= m < 224: return None
        i, t = divmod(m, 7)
        return mfma(OT(t, j), VF(j), PB(m & 1), 0 if i == 0 else OT(t, j))
    m = n + 1
    if not 0 <= m < 224: return None
    i, t = divmod(m, 7)
    kt, ds = divmod(j - 8, 4)
    d = SB(m & 1)[4*kt:4*kt+4]
    return mfma(d, KF(j - 8), QF(t, ds), NEGM(t) if ds == 0 else d)

def at_range(b, g0, g1, base_step, pat):
    for G in range(g0, g1):
        m = at_mfma(G)
        if CFG.get('at_skip') and m is not None and (G % CFG['at_skip']) != 0: m = None
        if m is not None: b.append(m)
        i, rel = divmod(G, atpat.STEP)
        for key, d in pat[rel]:
            ins = at_ins(key, i + d)
            if ins is None: continue
            if CFG.get('at_novalu') and key[0] in 'EAC': continue
            for x in ins:
                if x.tag: x.tag = (x.tag[0], x.tag[1] - base_step)
                if x.need: x.need = [(n, o - base_step) for n, o in x.need]
                b.append(x)

def attention(p, name):
    pat, pos, over = atpat.parse()
    b = p.block("k1_at_entry")
    b.append(label(f"L_{name}_at"))
    for t in range(7): b.append(vop("v_mov_b32", vL[t], 0))
    b += [waitvm(('KV', 0)), bar()]
    for f in range(8): b.append(dsr("ds_read_b128", KF(f), vKA[f & 3], (f >> 2) * 4096))
    b.append(smov(sCNT, 7))
    stamp(b, 3)
    at_range(b, -8, 120, 0, pat)
    b = p.block("k1_at_loop")
    b.append(label(f"L_{name}_atl"))
    at_range(b, 120, 120 + 448, 0, pat)
    b += [salu("s_sub_u32", sCNT, sCNT, 1), scmp("s_cmp_lg_u32", sCNT, 0), br("s_cbranch_scc1", f"L_{name}_atl")]
    b = p.block("k1_at_tail")
    at_range(b, 120 + 448 * 7, 32 * 112 + 8, 0, pat)
    stamp(b, 4)

def lane_reduce(b, regs, tmps, opname):
    for sw in ("v_permlane16_swap_b32", "v_permlane32_swap_b32"):
        for r, t in zip(regs, tmps): b.append(vop("v_mov_b32", t, r))
        for r, t in zip(regs, tmps): b.append(perm(sw, r, t))
        for r, t in zip(regs, tmps): b.append(vop(opname, r, r, t))

def check_and_store(p, name):
    b = p.block("k1_check")
    tm = [V(32 + 2 * t) for t in range(7)]
    lane_reduce(b, vL, tm, "v_add_f32")
    lo, hi, bad = sT[0], sT[1], S(64, 2)
    b += [smov(lo, hex(f2u(2.0 ** -32))), smov(hi, hex(f2u(2.0 ** 32))), raw("s_mov_b64 s[64:65], 0", 'salu', w=bad)]
    for t in range(7):
        b += [vop("v_cmp_nle_f32", 'vcc', lo, vL[t]), raw("s_or_b64 s[64:65], s[64:65], vcc", 'salu', w=bad + [('scc', 0)], r=bad + [('vcc', 0)]),
              vop("v_cmp_nge_f32", 'vcc', hi, vL[t]), raw("s_or_b64 s[64:65], s[64:65], vcc", 'salu', w=bad + [('scc', 0)], r=bad + [('vcc', 0)])]
    b += [salu("s_or_b32", sT[0], S(64), S(65)), salu("s_lshl_b32", sT[1], sWAVE, 2), salu("s_add_u32", sT[1], sT[1], RING(0) + 32768),
          vop("v_mov_b32", V(48), sT[1]), vop("v_mov_b32", V(49), sT[0]), vop("v_mov_b32", V(50), RING(0) + 32768),
          dsw("ds_write_b32", V(48), V(49), 0), waitlgkm0(), bar(), dsr("ds_read_b128", V(52, 4), V(50), 0)]
    for t in range(7): b.append(trans("v_rcp_f32", tm[t], vL[t]))
    b += [vop("v_or_b32", V(52), V(52), V(53)), vop("v_or3_b32", V(52), V(52), V(54), V(55)), vop("v_readfirstlane_b32", sT[0], V(52)),
          scmp("s_cmp_eq_u32", sT[0], 0 if not CFG.get('at_novalu') else sT[0]), br("s_cbranch_scc1", f"L_{name}_store"),
          scmp("s_cmp_eq_u32", sPASS, 0), br("s_cbranch_scc1", f"L_{name}_maxpass")]
    b = p.block("k1_store")
    b.append(label(f"L_{name}_store"))
    voff = V(1)
    b += [vop("v_and_b32", voff, 63, V(0)), vop("v_lshlrev_b32", voff, 4, voff)]
    for t in range(7):
        rc = V(32 + 2 * t, 2)
        if t < 5: R = V(96 + 32 * t, 32)
        else:
            R = V(48, 32)
            for n in range(32): b.append(vop("v_accvgpr_read_b32", R[n:n+1], A(32 * (t - 5) + n)))
        for n in range(0, 32, 2): b.append(vop("v_pk_mul_f32", R[n:n+2], R[n:n+2], rc, extra="op_sel_hi:[1,0]"))
        for m in range(4):
            r = R[8*m:8*m+8]
            for n in range(4): b.append(vop("v_cvt_pk_bf16_f32", r[n:n+1], r[2*n:2*n+1], r[2*n+1:2*n+2]))
            off = m * 7168 + t * 1024
            b.append(smov(sT[m % 2], off & ~4095))
            b.append(vst("buffer_store_dwordx4", r[0:4], voff, SRD_O, sT[m % 2], off & 4095, CFG['o_flags']))
    stamp(b, 5)
    if CFG['stamps']:
        b.append(waitall())
        stamp(b, 6)
        b += [waitlgkm0(), raw("s_load_dwordx2 s[40:41], s[0:1], 96", w=S(40, 2)), waitlgkm0(),
              salu("s_add_u32", S(40), S(40), "0x4000000"), Ins("s_addc_u32 s41, s41, 0", 'salu', w=S(41), r=S(41)),
              smov(S(42), "0x100000"), smov(S(43), "0x20000"),
              salu("s_lshl_b32", sT[0], S(2), 2), salu("s_add_u32", sT[0], sT[0], sWAVE), salu("s_lshl_b32", sT[0], sT[0], 6)]
        for n in range(16): b += [vop("v_mov_b32", V(8 + n), S(80 + n))]
        b += [vop("v_mov_b32", V(2), 0), raw("s_mov_b64 exec, 1", 'salu', w=[('exec', 0)])]
        for n in range(4): b.append(vst("buffer_store_dwordx4", V(8 + 4 * n, 4), V(2), S(40, 4), sT[0], 16 * n))
    b += [label(f"L_{name}_end"), raw("s_endpgm")]

def maxpass(p, name):
    b = p.block("k1_max_pre")
    b.append(label(f"L_{name}_maxpass"))
    b += [smov(sPASS, 1), smov(sKV, 0), smov(sCNT, 32), bar()]
    for t in range(7): b.append(vop("v_mov_b32", vL[t], "0xff800000"))
    b = p.block("k1_max_loop")
    b.append(label(f"L_{name}_maxl"))
    b.append(salu("s_add_u32", M0, sMK, 0))
    for pp in range(4): b.append(dma(vKD[pp & 1], SRD_K, sKV, pp * 1024, CFG['kv_flags']))
    b += [salu("s_add_u32", sKV, sKV, 8192), waitall(), bar()]
    for f in range(8): b.append(dsr("ds_read_b128", KF(f), vKA[f & 3], (f >> 2) * 4096))
    b += [waitlgkm0(), bar()]
    for t in range(7):
        s = SB(t & 1)
        for kt in range(2):
            for ds in range(4):
                d = s[4*kt:4*kt+4]
                b.append(mfma(d, KF(4 * kt + ds), QF(t, ds), 0 if ds == 0 else d))
        for n in range(0, 8, 2): b.append(vop("v_max3_f32", vL[t], vL[t], s[n:n+1], s[n+1:n+2]))
    b += [salu("s_sub_u32", sCNT, sCNT, 1), scmp("s_cmp_lg_u32", sCNT, 0), br("s_cbranch_scc1", f"L_{name}_maxl")]
    b = p.block("k1_max_post")
    lane_reduce(b, vL, [V(32 + t) for t in range(7)], "v_max_f32")
    for t in range(7):
        for r in NEGM(t): b.append(vop("v_sub_f32", [r], 0, vL[t]))
    b.append(smov(sKV, sROT))
    for tile in range(4):
        for c, ins in kv_load_ops(tile, tile): b.append(ins)
    b.append(br("s_branch", f"L_{name}_at"))

def build(name="attn_kernel"):
    p = Program()
    prologue(p, name); qproj(p, name); attention(p, name); check_and_store(p, name); maxpass(p, name)
    main = [("k1_pro", {})] + [("k1_qp_loop", {'W': 4 * k, 'X': 2 * k}) for k in range(6)] + [("k1_qp_tail", {})]
    at = [("k1_at_entry", {})] + [("k1_at_loop", {'KV': 4 * k}) for k in range(7)] + [("k1_at_tail", {})] + [("k1_check", {})]
    fb = [("k1_max_pre", {})] + [("k1_max_loop", {})] * 2 + [("k1_max_post", {})]
    traces = [main + at + [("k1_store", {})], main + at + fb + at + [("k1_store", {})]]
    for tr in traces: p.insert_waits(tr)
    n = 0
    for tr in traces: n += p.fix_hazards(tr, verbose=CFG.get('verbose'))
    return p, n
if __name__ == "__main__":
    CFG['verbose'] = True
    p, n = build()
    print("nops", n)
    open("k1.txt", "w").write(p.text())
```

```python
STEP = 112
PAT_OLD = """
V00 V01|E00|V10 V11|E01|E02|V20 V21|E03|E04|V30 V31|E05|V40 C00|E06|V41 C01|E07|C02 C03|V50 V51
V60 V61|V70 V71|E10|M0+ E11|G00+ A00 A01|A02 A03|E12|E13|E14|G01+ A04 A05|E15|A06 A07|E16|E17 C10|C11 C12 C13|G02+ A10 A11
E20|E21|A12 A13|E22|E23|G03+ A14 A15|E24|E25|A16 A17|C20 C21|E26|M1+ E27|G10+ A20 A21|C22 C23|A22 A23|A24 A25
E30|E31|E32|E33|A26 A27|E34|E35|C30 C31|E36|E37|A30 A31|C32 C33|A32 A33|A34 A35|A36 A37|G11+
E40|E41|E42|E43|E44|E45|C40 C41|E46|E47|A40 A41|C42 C43|A42 A43|A44 A45|A46 A47|G12+|W G13+
B E50|U+ E51|Y+ E52|E53|E54|E55|C50 C51|E56|E57|K0 K1|C52 C53|K2 K3|K4 A50|K5 A51|K6 A52|K7 A53
E60|E61|E62|E63|A54 A55|E64|E65|A56 A57|C60 C61|E66|E67|A60 A61|C62 C63|A62 A63|A64 A65|A66 A67
"""
PAT = """
V00 V01|E00|V10 V11|E01|E02|V20 V21|E03|E04|V30 V31|E05|V40 C00|E06|V41 C01|E07|G02+ C02 C03|V50 V51
V60 V61|V70 V71|E10|E11|A00 A01|A02 A03|E12|E13|E14|A04 A05|E15|G03+ A06 A07|E16|E17 C10|C11 C12 C13|A10 A11
E20|E21|A12 A13|E22|E23|A14 A15|M1+ E24|E25|G10+ A16 A17|C20 C21|E26|E27|A20 A21|C22 C23|A22 A23|A24 A25
E30|E31|E32|E33|G11+|E34|E35|A26 A27|C30 C31|E36|E37|A30 A31|C32 C33|A32 A33|A34 A35|A36 A37
E40|E41|E42|E43|G12+|E44|E45|C40 C41|E46|E47|A40 A41|C42 C43|A42 A43|A44 A45|A46 A47|G13+ W
B E50|U+ E51|Y+ E52|E53|E54|E55|C50 C51|E56|M0 E57|K0 K1|G00 C52 C53|K2 K3|K4 A50|K5 A51|K6 A52|K7 A53
E60|E61|E62|E63|A54 A55|E64|E65|G01 A56 A57|C60 C61|E66|E67|A60 A61|C62 C63|A62 A63|A64 A65|A66 A67
"""
PAT2 = """
V00 V01|E00|V10 V11|E01|E02|V20 V21|E03|E04|V30 V31|E05|V40 C00|E06|M0+ V41 C01|E07|G00+ C02 C03|V50 V51
V60 V61|V70 V71|E10|E11|A00 A01|A02 A03|E12|E13|E14|A04 A05|E15|G01+ A06 A07|E16|E17 C10|C11 C12 C13|A10 A11
E20|E21|A12 A13|E22|E23|A14 A15|E24|E25|G02+ A16 A17|C20 C21|E26|E27|A20 A21|C22 C23|A22 A23|A24 A25
E30|E31|E32|E33|G03+|E34|E35|A26 A27|C30 C31|E36|E37|A30 A31|C32 C33|A32 A33|A34 A35|A36 A37
E40|E41|M1+ E42|E43|G10+|E44|E45|C40 C41|E46|E47|A40 A41|C42 C43|A42 A43|A44 A45|A46 A47|G11+ W
B E50|E51|E52|E53|E54|E55|C50 C51|E56|E57|K0 K1|G12+ C52 C53|K2 K3|K4 A50|K5 A51|K6 A52|K7 A53
E60|E61|E62|E63|A54 A55|E64|E65|G13+ A56 A57|C60 C61|U+ E66|E67|A60 A61|C62 C63|A62 A63|A64 A65|A66 A67
"""
def parse(pat=PAT):
    gaps = []
    for line in pat.strip().split("\n"):
        cells = line.split("|")
        assert len(cells) == 16, (len(cells), line)
        for c in cells:
            l = []
            for tok in c.split():
                d = 0
                if tok.endswith("+"): tok = tok[:-1]; d = -1
                l.append((tok, d))
            gaps.append(l)
    assert len(gaps) == STEP
    pos = {}
    for g, l in enumerate(gaps):
        for k, d in l:
            assert k not in pos, k
            pos[k] = g - d * STEP
    for t in range(7):
        b = 16 * t
        for j in range(8):
            e = pos[f"E{t}{j}"]; assert e >= b + (0 if j < 4 else 3), (t, j)
            a = pos[f"A{t}{j}"]; assert e < a <= b + 16 + (7 if j < 4 else 11), (t, j, a)
        for c in range(4):
            x = pos[f"C{t}{c}"]; assert x > pos[f"E{t}{2*c}"] and x > pos[f"E{t}{2*c+1}"] and x <= b + 14, (t, c)
    for dt in range(8):
        for h in range(2): assert dt <= pos[f"V{dt}{h}"] <= 11 + dt
    for f in range(8): assert max(88 + f, pos['B']) <= pos[f"K{f}"] <= 99 + f
    over = 0
    for l in gaps:
        u = sum({'E': 2, 'G': 2, 'A': 1, 'C': 1, 'V': 1, 'K': 1}.get(k[0], 0) for k, _ in l)
        over += max(0, u - 2)
    return gaps, pos, over
if __name__ == "__main__":
    g, p, o = parse(); print("overflow", o, "ops", len(p))
```

```python
from core import *
import atpat, struct

def f2u(x): return struct.unpack("<I", struct.pack("<f", x))[0]
RING = lambda r: r * 40960
DEFAULT = dict(kv_flags="nt", x_flags="", w_flags="", o_flags="sc1", o2_flags="sc1", w2_flags="", out_flags="", early_flags="", pf_wo_flags="",
               stamps=False, trace=False, local=False, thr=3, thr_tail=None, pat='PAT2', ne=2, pf0=6, pfs=0, kfill=5, ng=32, sleep=1, op_hi=52, opm=True,
               wo_gaps=(29 * 112 + 52, 30 * 112 + 14))
CFG = dict(DEFAULT)
M0 = 'm0'
FLAGS = 0x2000000
OOB = "0x40000000"
SRD_X, SRD_W, SRD_KV, SRD_F, SRD_O = S(4, 4), S(8, 4), S(12, 4), S(16, 4), S(20, 4)
SRD_O2, SRD_W2, SRD_C = S(4, 4), S(8, 4), S(20, 4)
sWAVE, sHH, sRHO = S(24), S(25), S(26)
sX, sW, sKV = S(27), S(28), S(29)
sO2, sW2 = S(27), S(28)
sMX, sMW, sMK, sMA = S(30), S(31), S(32), S(33)
sCNT, sPASS = S(34), S(35)
KP = lambda i: S(36 + 2 * i, 2)
sSCALE = S(62)
sC7F, sC1K = S(63), S(75)
sT = [S(64 + i) for i in range(5)]
sKH, sKO, sDH, sDO = S(69), S(70), S(71), S(76)
sNON, sXW = S(71), S(76)
sBLK, sB, sHP = S(72), S(73), S(74)
sWOP, sSLOT, sXCC, sFAST, sTRI, sPM = S(77), S(78), S(79), S(97), S(96), S(69)
vWA = [V(1 + i) for i in range(8)]
vXA = [V(9), V(10)]
vKD = [V(13), V(14)]
vTMP = [V(15), V(16)]
vXD = [V(17 + i) for i in range(7)]
vWD = [V(24 + i) for i in range(4)]
vB = [V(28), V(29), V(30), V(31)]
ACC = lambda dt, qt: V(32 + (qt * 8 + dt) * 4, 4)
QA = lambda dt: A(176 + 4 * dt, 4)
QB = lambda buf, qt: A((208 if buf == 0 else 0) + 4 * qt, 4)
QA31 = lambda dt: A(28 + 4 * dt, 4)
QB31 = lambda qt: A(236 + 4 * qt, 4) if qt < 5 else (A(60, 4) if qt == 5 else A(160, 4))
vKA = [V(1 + i) for i in range(4)]
vVA = [V(5 + i) for i in range(8)]
vL = [V(17 + i) for i in range(7)]
PB = lambda buf: V(24 + 4 * buf, 4)
SB = lambda buf: V(32 + 8 * buf, 8)
NEGM = lambda t: V(48 + 4 * t, 4)
def OT(t, dt): return V(96 + 32 * t + 4 * dt, 4) if t < 5 else A(32 * (t - 5) + 4 * dt, 4)
QF = lambda t, ds: A(64 + 16 * t + 4 * ds, 4)
KF = lambda f: A(176 + 4 * f, 4)
VF = lambda dt: A(208 + 4 * dt, 4)
vLN, vDUM, vXC, vXO = V(88), V(89), V(80), V(81)
vWA2 = [V(1 + i) for i in range(8)]
vWD2 = [V(9 + i) for i in range(8)]
vOD = [V(17), V(18)]
vR = [V(19 + i) for i in range(4)]
vC = V(23)
ACC2 = lambda n, qt: V(32 + (n * 7 + qt) * 4, 4)
FA = lambda n: A(4 * n, 4)
FA31 = lambda n: A(144 + 4 * n, 4)
FB = lambda buf, qt: A(32 + 28 * buf + 4 * qt, 4)

vop = valu
def smul(d, a, b): return salu("s_mul_i32", d, a, b, scc=False)
def csel(d, a, b): return Ins(f"s_cselect_b32 {op(d)}, {op(a)}, {op(b)}", 'salu', w=regs_of(d), r=regs_of(a, b) + [('scc', 0)])
def setexec(v): return raw(f"s_mov_b64 exec, {v}", 'salu', w=[('exec', 0)])
def srd(b, dst, ptr, off, size):
    b.append(salu("s_add_u32", [dst[0]], [ptr[0]], off))
    b.append(Ins(f"s_addc_u32 {rt([dst[1]])}, {rt([ptr[1]])}, 0", 'salu', w=[dst[1], ('scc', 0)], r=[ptr[1], ('scc', 0)]))
    b.append(smov([dst[2]], size)); b.append(smov([dst[3]], "0x20000"))
def stamp(b, n):
    if CFG['stamps']:
        b += [raw("s_memrealtime s[100:101]"), waitlgkm0(), smov(S(80 + n), S(100))]
        if n in CFG.get('cyc', ()): b += [raw("s_memtime s[98:99]"), waitlgkm0(), smov(S(92 + CFG['cyc'].index(n)), S(98))]
def thr(n): return Ins(f"s_waitcnt vmcnt({n})", 'thr', tag=n)
def touch(dst, voff, srd_, soff, fl=""):
    i = vld("buffer_load_dword", dst, voff, srd_, soff, 0, fl); i.w = []
    return i
def place(gaps, seq, free, lo, hi):
    ng = sum(c == 'G' for c, _ in seq)
    gpos = [free[(n * len(free)) // ng] for n in range(ng)] if ng else []
    assert len(set(gpos)) == ng, (ng, len(free))
    n = 0
    for c, ins in seq:
        if c == 'G': gaps[gpos[n]].append(ins); n += 1
        elif c == 'T': gaps[gpos[n]].append(ins)
        else:
            prev = gpos[n - 1] if n else lo
            nxt = gpos[n] if n < ng else hi
            if prev + 1 < nxt:
                gg = gaps[nxt - 1 if nxt < hi else prev + 1]
                k = 0
                while k < len(gg) and gg[k].kind in ('salu', 'waitvm', 'waitlgkm0', 'bar'): k += 1
                gg.insert(k, ins)
            else: gaps[prev].append(ins)

def prologue(p):
    b = p.block("pro")
    b += [scmp("s_cmp_ge_u32", S(2), 256), br("s_cbranch_scc1", "L_end")]
    stamp(b, 0)
    b += [raw("s_load_dwordx16 s[36:51], s[0:1], 0", w=S(36, 16)), raw("s_load_dwordx8 s[52:59], s[0:1], 64", w=S(52, 8)),
          raw("s_load_dwordx2 s[60:61], s[0:1], 96", w=S(60, 2))]
    lane, i16, g, r_, c_ = V(28), V(29), V(30), V(31), V(11)
    tmp, tmp2 = V(12), V(1)
    b += [vop("v_lshrrev_b32", tmp, 6, V(0)), vop("v_and_b32", lane, 63, V(0)), vop("v_readfirstlane_b32", sWAVE, tmp),
          vop("v_and_b32", i16, 15, lane), vop("v_lshrrev_b32", g, 4, lane)]
    b += [salu("s_lshr_b32", sHH, sWAVE, 1), salu("s_and_b32", sRHO, sWAVE, 1)]
    j_, t0, t1, t2, t3 = sT
    b += [salu("s_and_b32", t0, S(2), 7), salu("s_lshr_b32", j_, S(2), 3), salu("s_lshr_b32", sBLK, t0, 2)]
    if CFG['local']:
        b += [salu("s_and_b32", sB, t0, 3), salu("s_lshl_b32", sB, sB, 1), salu("s_and_b32", t1, j_, 1), salu("s_add_u32", sB, sB, t1), salu("s_lshr_b32", sHP, j_, 1)]
    else:
        b += [salu("s_and_b32", sB, t0, 1), salu("s_lshl_b32", sB, sB, 2), salu("s_and_b32", t1, j_, 3), salu("s_add_u32", sB, sB, t1),
              salu("s_bfe_u32", sHP, t0, "0x10001"), salu("s_lshl_b32", sHP, sHP, 3), salu("s_lshr_b32", t1, j_, 2), salu("s_add_u32", sHP, sHP, t1)]
    b += [salu("s_lshl_b32", sSLOT, sBLK, 3), salu("s_add_u32", sSLOT, sSLOT, sB), salu("s_lshl_b32", sSLOT, sSLOT, 4), salu("s_add_u32", sSLOT, sSLOT, sHP)]
    b += [salu("s_lshl_b32", sWOP, j_, 2), salu("s_and_b32", t1, S(2), 3), salu("s_add_u32", sWOP, sWOP, t1), salu("s_lshl_b32", sWOP, sWOP, 2),
          salu("s_add_u32", sWOP, sWOP, sWAVE), salu("s_lshl_b32", sWOP, sWOP, 14)]
    b += [smul(t0, sHH, 40960), salu("s_lshl_b32", t1, sRHO, 12), salu("s_add_u32", sMW, t0, t1), salu("s_add_u32", sMW, sMW, RING(2) + 8192),
          smul(t2, sRHO, 7168), salu("s_add_u32", sMX, t0, t2), salu("s_add_u32", sMX, sMX, 8192),
          smul(t2, sRHO, RING(2)), salu("s_add_u32", sMK, t0, t2), smul(sMA, sWAVE, 40960)]
    b += [salu("s_lshl_b32", t3, sRHO, 4), vop("v_add_u32", tmp, t3, g), vop("v_lshlrev_b32", tmp, 13, tmp),
          salu("s_lshl_b32", t3, sHH, 8), vop("v_add_u32", tmp, t3, tmp),
          vop("v_lshlrev_b32", tmp2, 1, g), vop("v_xor_b32", tmp2, tmp2, i16), vop("v_lshlrev_b32", V(2), 4, tmp2), vop("v_xor_b32", V(3), 128, V(2))]
    for pp in range(4):
        b += [vop("v_add_u32", vWD[pp], tmp, V(2) if pp < 2 else V(3)), vop("v_add_u32", vWD[pp], pp * 32768 - pp * 1024, vWD[pp])]
    b += [vop("v_lshrrev_b32", tmp, 3, lane), smul(t2, sHH, 112), smul(t3, sRHO, 56), salu("s_add_u32", t2, t2, t3),
          vop("v_add_u32", tmp, t2, tmp), vop("v_lshlrev_b32", tmp, 11, tmp),
          vop("v_and_b32", tmp2, 7, lane), vop("v_xor_b32", tmp2, tmp2, g), salu("s_lshl_b32", t3, sRHO, 2),
          vop("v_xor_b32", tmp2, t3, tmp2), vop("v_lshlrev_b32", V(2), 4, tmp2), vop("v_xor_b32", V(3), 64, V(2))]
    for pp in range(7):
        b += [vop("v_add_u32", vXD[pp], tmp, V(2) if pp % 2 == 0 else V(3)), vop("v_add_u32", vXD[pp], pp * 16384 - (pp & 3) * 1024, vXD[pp])]
    b += [smov(sX, 0), smov(sW, 0), vop("v_mov_b32", vTMP[0], 0), waitlgkm0()]
    b.append(scmp("s_cmp_eq_u32", sBLK, 0))
    for i in (3, 0, 1, 2, 4):
        for hl in range(2): b.append(csel(S(36 + 2 * i + hl), S(36 + 2 * i + hl), S(46 + 2 * i + hl)))
    b += [salu("s_lshl_b32", t0, sHP, 9), salu("s_sub_u32", t2, 8388608, t0)]; srd(b, SRD_W, KP(3), t0, t2)
    b += [smul(t0, sB, 458752)]; srd(b, SRD_X, KP(0), t0, 458752)
    def ldx(pair):
        for pp in range(7):
            if pp % 4 == 0: b.append(salu("s_add_u32", M0, sMX, (pair & 1) * 18432 + (pp >> 2) * 4096))
            b.append(dma(vXD[pp], SRD_X, sX, (pp & 3) * 1024, CFG['x_flags'], tag=('X', pair)))
        b.append(salu("s_add_u32", sX, sX, 128))
    def ldw(ks):
        b.append(salu("s_add_u32", M0, sMW, (ks & 3) * 8192))
        for pp in range(4): b.append(dma(vWD[pp], SRD_W, sW, pp * 1024, CFG['w_flags'], tag=('W', ks)))
        b.append(salu("s_add_u32", sW, sW, 262144))
    ldw(0); ldx(0)
    srd(b, SRD_F, KP(12), FLAGS, 4096 + 256 * 128)
    b += [salu("s_or_b32", t0, sSLOT, sWAVE), scmp("s_cmp_lg_u32", t0, 0), br("s_cbranch_scc1", "L_ep1")]
    b = p.block("ep1")
    b.append(vld("buffer_load_dword", vTMP[1], vTMP[0], SRD_F, 0, 0, "sc1"))
    b = p.block("pro2")
    b.append(label("L_ep1"))
    ldw(1); ldx(1); ldw(2); ldw(3)
    b += [vop("v_and_b32", tmp2, 2, g), vop("v_lshlrev_b32", tmp2, 1, tmp2), vop("v_and_b32", V(2), 1, g), vop("v_or_b32", tmp2, tmp2, V(2)),
          vop("v_lshlrev_b32", V(2), 1, g), scmp("s_cmp_eq_u32", sRHO, 0), Ins("s_cselect_b64 vcc, -1, 0", 'salu', w=[('vcc', 0)], r=[('scc', 0)]),
          vop("v_cndmask_b32", tmp2, V(2), tmp2, 'vcc'), vop("v_xor_b32", tmp2, tmp2, i16), vop("v_lshlrev_b32", tmp2, 4, tmp2),
          vop("v_lshl_add_u32", vKD[0], g, 8, tmp2), vop("v_xor_b32", vKD[1], 128, vKD[0])]
    for hl in range(2): b.append(csel(S(38 + hl), S(38 + hl), S(40 + hl)))
    b += [salu("s_lshl_b32", t0, sB, 5), salu("s_lshl_b32", t2, sHP, 1), salu("s_add_u32", t0, t0, t2), salu("s_add_u32", t0, t0, sHH), salu("s_lshl_b32", t0, t0, 18)]
    srd(b, SRD_KV, KP(1), t0, 262144)
    b += [salu("s_lshr_b32", t0, sSLOT, 4), salu("s_lshl_b32", t0, t0, 1), salu("s_add_u32", t0, t0, sRHO), salu("s_lshl_b32", t0, t0, 5),
          salu("s_lshl_b32", t2, sHP, 1), salu("s_add_u32", t0, t0, t2), salu("s_add_u32", t0, t0, sHH), smul(t0, t0, 28672)]
    srd(b, SRD_O, KP(12), t0, 28672)
    b += [Ins("s_getreg_b32 s79, hwreg(HW_REG_XCC_ID, 0, 4)", 'salu', w=sXCC), smov(sPASS, 0), smov(sSCALE, hex(f2u(1.4426950408889634 / 128 ** 0.5))),
          smov(sC7F, "0x7fff"), smov(sC1K, 1024)]
    b += [vop("v_lshrrev_b32", tmp, 1, i16), vop("v_xor_b32", tmp, tmp, g), vop("v_lshlrev_b32", tmp, 4, tmp), vop("v_lshlrev_b32", tmp2, 7, i16),
          smul(t0, sRHO, 40960), salu("s_add_u32", t0, t0, 8192),
          vop("v_add_u32", tmp2, t0, tmp2), vop("v_add_u32", vXA[0], tmp2, tmp), vop("v_xor_b32", tmp, 64, tmp), vop("v_add_u32", vXA[1], tmp2, tmp)]
    a_, b_ = V(33), V(34)
    b += [vop("v_bfe_u32", r_, lane, 2, 2), vop("v_and_b32", c_, 3, lane), smul(t0, sHH, 40960), salu("s_add_u32", t1, t0, RING(2) + 8192),
          vop("v_lshl_add_u32", tmp, g, 3, r_), vop("v_lshlrev_b32", tmp, 8, tmp), vop("v_lshl_add_u32", tmp, c_, 3, tmp), vop("v_add_u32", tmp, t1, tmp),
          vop("v_and_b32", a_, 1, g), vop("v_lshl_add_u32", a_, a_, 2, r_), vop("v_lshlrev_b32", a_, 5, a_)]
    for dt in range(8): b += [vop("v_xor_b32", vWA[dt], dt * 32, a_), vop("v_add_u32", vWA[dt], tmp, vWA[dt])]
    b += [vop("v_lshl_add_u32", a_, g, 2, r_), vop("v_lshlrev_b32", a_, 8, a_), vop("v_lshl_add_u32", a_, c_, 3, a_), salu("s_add_u32", t1, t0, RING(2)),
          vop("v_add_u32", vB[3], t1, a_),
          vop("v_and_b32", a_, 1, g), vop("v_lshlrev_b32", a_, 1, a_), vop("v_lshrrev_b32", b_, 1, g), vop("v_or_b32", a_, a_, b_),
          vop("v_and_b32", b_, 1, i16), vop("v_xor_b32", a_, a_, b_), vop("v_and_b32", b_, 6, i16), vop("v_lshlrev_b32", b_, 1, b_), vop("v_xor_b32", a_, a_, b_),
          vop("v_lshlrev_b32", vB[0], 4, a_), vop("v_lshlrev_b32", b_, 8, i16), vop("v_add_u32", vB[1], t0, b_)]
    for r in range(32, 256, 2): b.append(vop("v_mov_b64", V(r, 2), 0))
    b += [smov(sCNT, 7), smov(sKH, 0), smov(sDH, 0), smov(sKO, CFG['pf0'] * 8192 if CFG['pfs'] else OOB), smov(sDO, CFG['pfs'] * 8192),
          salu("s_or_b32", t0, sSLOT, sWAVE), scmp("s_cmp_lg_u32", t0, 0), br("s_cbranch_scc1", "L_ep2")]
    b = p.block("ep2")
    srd(b, S(64, 4), KP(11), 0, 256)
    b += [vop("v_add_u32", vTMP[1], 1, vTMP[1]), vop("v_max_u32", vTMP[1], 1, vTMP[1]), setexec(1),
          vst("buffer_store_dword", vTMP[1], vTMP[0], SRD_F, 0, 0, "sc1"), vst("buffer_store_dword", vTMP[1], vTMP[0], S(64, 4), 0, 0, "sc1"), setexec(-1)]
    b = p.block("pro3")
    b.append(label("L_ep2"))
    b += [waitvm(('X', 0), ('W', 0)), bar()]
    for qt in range(7): b.append(dsr("ds_read_b128", QB(0, qt), vXA[0], qt * 2048))
    for dt in range(8):
        for h in range(2): b.append(dsr("ds_read_b64_tr_b16", QA(dt)[2*h:2*h+2], vWA[dt], h * 1024))
    stamp(b, 1)

def kv_ops(tile, thr_=None):
    o = []
    for pp in range(8):
        o += [('S', salu("s_and_b32", sPM, sKV, sC7F)), ('S', salu("s_add_u32", M0, sMK, sPM))]
        if thr_ is not None: o.append(('T', thr(thr_)))
        o += [('G', dma(vKD[pp & 1], SRD_KV, sKV, 0, CFG['kv_flags'], tag=('P', 8 * tile + pp))), ('S', salu("s_add_u32", sKV, sKV, sC1K))]
    return o

A_GAPS = [7 * dt + 6 for dt in range(8)]
D_GAPS = [8, 15, 22, 29, 36, 43, 50]
def qp_step(b, s, srel, kv=None, extra=(), early=None, both=False):
    gaps = [[] for _ in range(56)]
    used = []
    w = waitvm(('W', srel + 1))
    if (s + 1) % 2 == 0: w.need.append(('X', (srel + 1) // 2))
    if both:
        w.need.append(('W', srel + 2))
        for dt, g in enumerate((9, 16, 23, 30, 37, 44, 51, 53)):
            used.append(g)
            for h in range(2): gaps[g].append(dsr("ds_read_b64_tr_b16", QA31(dt)[2*h:2*h+2], vWA[dt], ((s + 2) & 3) * 8192 + h * 1024))
        for qt, g in enumerate((11, 18, 25, 32, 39, 46, 52)):
            used.append(g)
            gaps[g].append(dsr("ds_read_b128", QB31(qt), vXA[1], 18432 + qt * 2048))
    gaps[5] += [w, waitlgkm0()]
    gaps[6].append(bar())
    for dt in range(8):
        for h in range(2): gaps[A_GAPS[dt]].append(dsr("ds_read_b64_tr_b16", QA(dt)[2*h:2*h+2], vWA[dt], ((s + 1) & 3) * 8192 + h * 1024))
    pair, par = (s + 1) >> 1, (s + 1) & 1
    for qt, g in enumerate(D_GAPS):
        gaps[g].append(dsr("ds_read_b128", QB((s + 1) & 1, qt), vXA[par], (pair & 1) * 18432 + qt * 2048))
    seq = []
    if early is not None:
        for n in range(early):
            seq += [('S', salu("s_add_u32", M0, sMK, sKH)), ('G', dma(vKD[n & 1], SRD_KV, sKO, 0, CFG['early_flags'], tag=('P', 7))),
                    ('S', salu("s_add_u32", sKH, sKH, sDH)), ('S', salu("s_add_u32", sKO, sKO, sDO))]
    if s % 2 == 1 and (s + 3) // 2 <= 15:
        pair = (s + 3) // 2
        for pp in range(7):
            if pp % 4 == 0: seq.append(('S', salu("s_add_u32", M0, sMX, (pair & 1) * 18432 + (pp >> 2) * 4096)))
            seq.append(('G', dma(vXD[pp], SRD_X, sX, (pp & 3) * 1024, CFG['x_flags'], tag=('X', (srel + 3) // 2))))
        seq.append(('S', salu("s_add_u32", sX, sX, 128)))
    if s + 4 <= 31:
        seq.append(('S', salu("s_add_u32", M0, sMW, (s & 3) * 8192)))
        for pp in range(4): seq.append(('G', dma(vWD[pp], SRD_W, sW, pp * 1024, CFG['w_flags'], tag=('W', srel + 4))))
        seq.append(('S', salu("s_add_u32", sW, sW, 262144)))
    if kv is not None: seq += kv_ops(kv, CFG['thr_tail'])
    free = [g for g in range(9, 55) if g not in A_GAPS and g not in D_GAPS and g not in used]
    place(gaps, seq, free, 7, 56)
    for g, ins in extra: gaps[g].append(ins)
    for j in range(56):
        dt, qt = divmod(j, 7)
        b.append(mfma(ACC(dt, qt), QA(dt), QB(s & 1, qt), ACC(dt, qt)))
        b += gaps[j]

def conv_ops(qt):
    st = []
    for ds in range(4):
        t0, t1 = ACC(2 * ds, qt), ACC(2 * ds + 1, qt)
        q = QF(qt, ds)
        st.append(([vop("v_mul_f32", [r], sSCALE, [r]) for r in t0 + t1],
                   [vop("v_cvt_pk_bf16_f32", t[n:n+1], t[2*n:2*n+1], t[2*n+1:2*n+2]) for t in (t0, t1) for n in range(2)],
                   [perm("v_permlane16_swap_b32", t0[0:1], t1[0:1]), perm("v_permlane16_swap_b32", t0[1:2], t1[1:2])],
                   [vop("v_accvgpr_write_b32", q[n:n+1], src) for n, src in enumerate((t0[0:1], t0[1:2], t1[0:1], t1[1:2]))]))
    o = []
    for u, k in ((0,0),(1,0),(0,1),(2,0),(1,1),(0,2),(3,0),(2,1),(1,2),(0,3),(3,1),(2,2),(1,3),(3,2),(2,3),(3,3)):
        o += [(16 * qt + 4 * u + 5, i) for i in st[u][k]]
    return o

def qproj(p):
    b = p.block("qp_loop")
    b.append(label("L_qp"))
    for s in range(4): qp_step(b, s, s, early=CFG['ne'] if s % 2 == 0 else None)
    nreal = 8 // (2 * CFG['ne'])
    b += [scmp("s_cmp_eq_u32", sCNT, nreal + 1), csel(sKO, 0, sKO), csel(sDO, 1024, sDO), csel(sDH, 1024, sDH),
          salu("s_sub_u32", sCNT, sCNT, 1), scmp("s_cmp_lg_u32", sCNT, 0), br("s_cbranch_scc1", "L_qp")]
    b = p.block("qp_tail")
    srd(b, S(64, 4), KP(11), 0, 256)
    b += [smov(sKV, 8192), vld("buffer_load_dword", vTMP[1], vTMP[0], S(64, 4), 0, 0, "sc1")]
    qp_step(b, 28, 28)
    b += [vop("v_readfirstlane_b32", sNON, vTMP[1]), smov(sCNT, "0x200000"), scmp("s_cmp_lg_u32", sNON, 0), br("s_cbranch_scc1", "L_tag")]
    b = p.block("tagspin")
    b += [label("L_tagspin"), raw("s_sleep 4"), vld("buffer_load_dword", vTMP[1], vTMP[0], S(64, 4), 0, 0, "sc1"), waitall(), vop("v_readfirstlane_b32", sNON, vTMP[1]),
          salu("s_sub_u32", sCNT, sCNT, 1), scmp("s_cmp_eq_u32", sCNT, 0), br("s_cbranch_scc1", "L_tag"),
          scmp("s_cmp_eq_u32", sNON, 0), br("s_cbranch_scc1", "L_tagspin")]
    b = p.block("qp_tail2")
    b.append(label("L_tag"))
    b += [salu("s_add_u32", sXW, sXCC, 1), salu("s_lshl_b32", sXW, sXW, 24), salu("s_add_u32", sXW, sXW, sNON),
          salu("s_lshl_b32", sSLOT, sSLOT, 7), salu("s_add_u32", sSLOT, sSLOT, 4096), vop("v_mov_b32", vTMP[1], sXW),
          scmp("s_cmp_lg_u32", sWAVE, 0), br("s_cbranch_scc1", "L_nopub")]
    b = p.block("pub")
    b += [setexec(1), vst("buffer_store_dword", vTMP[1], vTMP[0], SRD_F, sSLOT, 4, "sc1"), setexec(-1)]
    b = p.block("qp_tail3")
    b.append(label("L_nopub"))
    qp_step(b, 29, 29, kv=1, both=True)
    gaps = [[] for _ in range(112)]
    gaps[5] += [waitvm(('P', 7)), waitlgkm0()]; gaps[6].append(bar())
    place(gaps, kv_ops(2, CFG['thr_tail']) + kv_ops(3, CFG['thr_tail']), list(range(9, 92)), 7, 112)
    for f in range(8): gaps[96 + 2 * f + 1].append(dsr("ds_read_b128", KF(f), vKA[f & 3], (f >> 2) * 4096))
    q = []
    for ds in range(4): q += [(0, vop("v_xor_b32", vKA[ds], ds * 64, vB[0])), (0, vop("v_add_u32", vKA[ds], vB[1], vKA[ds]))]
    q += [(0, vop("v_lshrrev_b32", vB[0], 4, V(0))), (0, vop("v_and_b32", vB[0], 1, vB[0])), (0, vop("v_bfe_u32", vB[1], V(0), 2, 2)),
          (0, vop("v_lshl_add_u32", vB[0], vB[0], 2, vB[1])), (0, vop("v_lshlrev_b32", vB[0], 5, vB[0]))]
    for dt in range(8): q += [(0, vop("v_xor_b32", vVA[dt], dt * 32, vB[0])), (0, vop("v_add_u32", vVA[dt], vB[3], vVA[dt]))]
    for t in range(7): q.append((0, vop("v_mov_b32", vL[t], 0)))
    for qt in range(7):
        q += conv_ops(qt)
        if qt == 1:
            for t in range(7):
                for n in (0, 2): q.append((0, vop("v_mov_b64", NEGM(t)[n:n+2], 0)))
            q += [(0, vop("v_and_b32", vLN, 63, V(0))), (0, vop("v_and_b32", vXO, 15, V(0))), (0, vop("v_lshlrev_b32", vLN, 7, vLN)), (0, vop("v_lshlrev_b32", vXO, 7, vXO))]
    sc = []
    srd(sc, SRD_X, KP(4), 0, 8388608)
    for n, ins in enumerate(sc): gaps[1 + n // 2].append(ins)
    g = 1
    while q and g < 112:
        room = CFG['kfill'] - 2 * sum(i.kind in VM for i in gaps[g]) - sum(i.kind in LG for i in gaps[g])
        while q and room > 0 and q[0][0] <= g:
            gaps[g].append(q.pop(0)[1]); room -= 1
        g += 1
    for j in range(112):
        qt, r = divmod(j, 16); dt, k = divmod(r, 2)
        b.append(mfma(ACC(dt, qt), QA31(dt) if k else QA(dt), QB31(qt) if k else QB(0, qt), ACC(dt, qt)))
        b += gaps[j]
    if CFG['trace']: b += [smov(sTRI, 32), vop("v_mov_b32", V(95), 0), vop("v_and_b32", V(94), 63, V(0))]
    stamp(b, 2)
    if CFG['ng'] != 32 or True: b.append(smov(sCNT, 7))
    stamp(b, 3)
    rest = [i for _, i in q]
    per = (len(rest) + 7) // 8
    for G in range(-8, 0):
        b.append(at_mfma(G))
        b += rest[:per]; rest = rest[per:]

def at_ins(key, i):
    k = key[0]
    if not 0 <= i <= 31: return None
    if k in 'ECA':
        t = int(key[1]); j = int(key[2]); n = 7 * i + t
        s = SB(n & 1)
        if k == 'E': return [trans("v_exp_f32", s[j:j+1], s[j:j+1])]
        if k == 'A': return [vop("v_add_f32", vL[t], vL[t], s[j:j+1])]
        return [vop("v_cvt_pk_bf16_f32", PB(n & 1)[j:j+1], s[2*j:2*j+1], s[2*j+1:2*j+2])]
    if k == 'V':
        dt, h = int(key[1]), int(key[2])
        o = [dsr("ds_read_b64_tr_b16", VF(dt)[2*h:2*h+2], vVA[dt], (i & 3) * 8192 + h * 4096)]
        if CFG['trace'] and key == 'V00' and i > 0:
            o += [vop("v_cmp_eq_u32", 'vcc', sTRI, V(94)), vop("v_mov_b32", V(93), S(100)), salu("s_add_u32", sTRI, sTRI, 1), vop("v_cndmask_b32", V(95), V(95), V(93), 'vcc')]
        return o
    if i + 1 > 31: return None
    if k == 'K':
        f = int(key[1])
        return [dsr("ds_read_b128", KF(f), vKA[f & 3], ((i + 1) & 3) * 8192 + (f >> 2) * 4096)]
    if k == 'W': return [waitvm(('P', 8 * i + 15, 'T'))]
    if k == 'B': return [bar()] + ([raw("s_memrealtime s[100:101]")] if CFG['trace'] else [])
    raise KeyError(key)

def at_mfma(G):
    n, j = divmod(G, 16)
    if j < 8:
        m = n - 1
        if not 0 <= m < 224: return None
        i, t = divmod(m, 7)
        return mfma(OT(t, j), VF(j), PB(m & 1), 0 if i == 0 else OT(t, j))
    m = n + 1
    if not 0 <= m < 224: return None
    i, t = divmod(m, 7)
    kt, ds = divmod(j - 8, 4)
    d = SB(m & 1)[4*kt:4*kt+4]
    return mfma(d, KF(j - 8), QF(t, ds), NEGM(t) if ds == 0 else d)

def at_range(b, g0, g1, pat, gsel, piece):
    pre = {}
    for G in gsel:
        pre.setdefault(G - 2, []).append(salu("s_and_b32", sPM, sKV, sC7F)); pre.setdefault(G - 1, []).append(salu("s_add_u32", M0, sMK, sPM))
        pre.setdefault(G + (2 if G % 112 == 79 else 1), []).insert(0, salu("s_add_u32", sKV, sKV, sC1K))
    for G in range(g0, g1):
        m = at_mfma(G)
        if m is not None: b.append(m)
        b += pre.pop(G, [])
        i, rel = divmod(G, atpat.STEP)
        if G in CFG['wo_gaps']: b += [touch(vDUM, vLN, SRD_X, sWOP, CFG['pf_wo_flags']), salu("s_add_u32", sWOP, sWOP, 8192)]
        if G == 30 * 112 + 52 and CFG['local']:
            b += [salu("s_sub_u32", sT[0], sSLOT, 4096), salu("s_and_b32", sT[0], sT[0], "0xfffff800"), salu("s_add_u32", sT[0], sT[0], 4096),
                  vld("buffer_load_dword", vXC, vXO, SRD_F, sT[0], 4, "sc1")]
        if G in gsel:
            if CFG['thr'] is not None: b.append(thr(CFG['thr']))
            b.append(dma(vKD[(piece - CFG['_par0']) & 1], SRD_KV, sKV, 0, CFG['kv_flags'], tag=('P', piece))); piece += 1
        for key, d in pat[rel]:
            if key[0] in 'GMUY': continue
            ins = at_ins(key, i + d)
            if ins is not None: b += ins
    assert not pre, pre.keys()
    return piece

def attention(p):
    pat, pos, over = atpat.parse(getattr(atpat, CFG['pat']))
    gp = sorted(v % 112 for k, v in pos.items() if k[0] == 'G')
    NG = CFG['ng']
    CFG['_par0'] = 0
    ent = [g for g in gp if g > 80]
    body = [112 * i + g for i in range(1, 6) for g in gp if 120 <= 112 * i + g < 568]
    assert len(body) == 32
    drop = {32: [], 31: [112 * 2 + 27], 30: [112 * 2 + 27, 112 * 4 + 27]}[NG]
    body = [g for g in body if g not in drop]
    n_tail = 256 - 32 - len(ent) - 7 * NG
    tail = [112 * i + g for i in range(29, 31) for g in gp if 112 * i + g >= 3256][:max(0, n_tail)]
    allg = ent + [g + 448 * k for k in range(7) for g in body] + tail
    lead = 10 ** 9
    for n, G in enumerate(allg):
        tile = (32 + n) // 8
        assert G > 112 * (tile - 4) + 80, (n, G)
        if tile <= 31: lead = min(lead, 112 * (tile - 1) + 79 - G)
    CFG['_lead'] = lead
    b = p.block("at_entry")
    b.append(label("L_at"))
    pc = at_range(b, 0, 120, pat, set(ent), 32)
    b = p.block("at_loop")
    b.append(label("L_atl"))
    at_range(b, 120, 568, pat, set(body), pc)
    if NG % 2: b.append(Ins("v_swap_b32 v13, v14", 'valu', w=V(13, 2), r=V(13, 2)))
    b += [salu("s_sub_u32", sCNT, sCNT, 1), scmp("s_cmp_lg_u32", sCNT, 0), br("s_cbranch_scc1", "L_atl")]
    b = p.block("at_tail")
    CFG['_par0'] = (7 * NG) & 1
    at_range(b, 3256, 32 * 112 + 8, pat, set(tail), pc + 7 * NG)
    if (7 * NG) & 1: b.append(Ins("v_swap_b32 v13, v14", 'valu', w=V(13, 2), r=V(13, 2)))
    stamp(b, 4)
    if CFG['trace']: b += [vop("v_accvgpr_write_b32", A(240), V(95))]

def lane_reduce(b, regs, tmps, opname):
    for sw in ("v_permlane16_swap_b32", "v_permlane32_swap_b32"):
        for r, t in zip(regs, tmps): b.append(vop("v_mov_b32", t, r))
        for r, t in zip(regs, tmps): b.append(perm(sw, r, t))
        for r, t in zip(regs, tmps): b.append(vop(opname, r, r, t))

def ld_o2(ks, tag):
    o = [('G', vld("buffer_load_dwordx4", FB(ks & 3, qt), vOD[qt >> 2], SRD_O2, sO2, (qt & 3) * 1024, CFG['o2_flags'], tag=('O2', tag))) for qt in range(7)]
    return o + [('S', salu("s_add_u32", sO2, sO2, 7168))]
def ld_w2(ks, tag):
    o = []
    for pc in range(8):
        if pc % 4 == 0: o.append(('S', salu("s_add_u32", M0, sMA, (ks & 3) * 8192 + (pc >> 2) * 4096)))
        o.append(('G', dma(vWD2[pc], SRD_W2, sW2, (pc & 3) * 1024, CFG['w2_flags'], tag=('W2', tag))))
    return o + [('S', salu("s_add_u32", sW2, sW2, 65536))]

def check_store_handoff(p):
    b = p.block("check")
    tm = [V(32 + 2 * t) for t in range(7)]
    if CFG['local']:
        b += [vop("v_cmp_ne_u32", 'vcc', sXW, vXC), nop(1), salu("s_or_b32", sFAST, 'vcc_lo', 'vcc_hi')]
    lane_reduce(b, vL, tm, "v_add_f32")
    lo, hi, bad = sT[0], sT[1], S(66, 2)
    b += [smov(lo, hex(f2u(2.0 ** -32))), smov(hi, hex(f2u(2.0 ** 32))), raw("s_mov_b64 s[66:67], 0", 'salu', w=bad)]
    for t in range(7):
        b += [vop("v_cmp_nle_f32", 'vcc', lo, vL[t]), vop("v_cmp_nge_f32", S(98, 2), hi, vL[t]), trans("v_rcp_f32", tm[t], vL[t]),
              raw("s_or_b64 s[66:67], s[66:67], vcc", 'salu', w=bad + [('scc', 0)], r=bad + [('vcc', 0)]),
              raw("s_or_b64 s[66:67], s[66:67], s[98:99]", 'salu', w=bad + [('scc', 0)], r=bad + S(98, 2))]
    b += [salu("s_or_b32", sT[0], S(66), S(67)), salu("s_lshl_b32", sT[1], sWAVE, 2), salu("s_add_u32", sT[1], sT[1], RING(0) + 32768),
          vop("v_mov_b32", V(48), sT[1]), vop("v_mov_b32", V(49), sT[0]), vop("v_mov_b32", V(50), RING(0) + 32768),
          dsw("ds_write_b32", V(48), V(49), 0), waitlgkm0(), bar(), dsr("ds_read_b128", V(52, 4), V(50), 0),
          vop("v_and_b32", V(24), 63, V(0)), vop("v_lshlrev_b32", vOD[0], 4, V(24)), vop("v_add_u32", vOD[1], 4096, vOD[0]),
          vop("v_or_b32", V(52), V(52), V(53)), vop("v_or3_b32", V(52), V(52), V(54), V(55)), vop("v_readfirstlane_b32", sT[0], V(52)),
          scmp("s_cmp_eq_u32", sT[0], 0), br("s_cbranch_scc1", "L_store"),
          scmp("s_cmp_eq_u32", sPASS, 0), br("s_cbranch_scc1", "L_maxpass")]
    b = p.block("store")
    b.append(label("L_store"))
    stamp(b, 5)
    lane, i16, g, r_, c_, tmp, tmp2 = V(24), V(25), V(26), V(27), V(28), V(29), V(30)
    def stores(b, flags):
        for t in (5, 0, 6, 1, 2, 3, 4):
            rc = V(32 + 2 * t, 2)
            if t < 5: R = V(96 + 32 * t, 32)
            else:
                R = V(48, 32)
                for n in range(32): b.append(vop("v_accvgpr_read_b32", R[n:n+1], A(32 * (t - 5) + n)))
            for n in range(0, 32, 2): b.append(vop("v_pk_mul_f32", R[n:n+2], R[n:n+2], rc, extra="op_sel_hi:[1,0]"))
            for m in range(4):
                r = R[8*m:8*m+8]
                for n in range(4): b.append(vop("v_cvt_pk_bf16_f32", r[n:n+1], r[2*n:2*n+1], r[2*n+1:2*n+2]))
                off = m * 7168 + t * 1024
                b.append(smov(sT[m % 2], off & ~4095))
                b.append(vst("buffer_store_dwordx4", r[0:4], vOD[0], SRD_O, sT[m % 2], off & 4095, flags, tag=('OST', 0)))
    def publish(b, flags, n):
        stamp(b, 6)
        b += [vop("v_mov_b32", tmp, 0), vop("v_mov_b32", tmp2, sNON), waitvm(('OST', 0)), bar(), scmp("s_cmp_lg_u32", sWAVE, 0), br("s_cbranch_scc1", f"L_noflag")]
        b = p.block(f"flag{n}")
        b += [setexec(1), vst("buffer_store_dword", tmp2, tmp, SRD_F, sSLOT, 0, flags), setexec(-1)]
        return b
    if CFG['local']:
        b += [scmp("s_cmp_eq_u32", sFAST, 0), br("s_cbranch_scc1", "L_stfast")]
        b = p.block("st_slow"); stores(b, CFG['o_flags']); b = publish(b, "sc1", 0); b.append(br("s_branch", "L_noflag"))
        b = p.block("st_fast"); b.append(label("L_stfast")); stores(b, ""); publish(b, CFG.get('flag_fast', ""), 1)
    else:
        stores(b, CFG['o_flags']); publish(b, "sc1", 1)
    b = p.block("handoff")
    b.append(label("L_noflag"))
    stamp(b, 7)
    t0, t1, t2, rho2, ct = sT
    b += [salu("s_and_b32", rho2, sHP, 1), salu("s_lshr_b32", ct, sHP, 1), vop("v_and_b32", i16, 15, lane), vop("v_lshrrev_b32", g, 4, lane)]
    b += [vop("v_lshlrev_b32", tmp, 11, g), vop("v_lshlrev_b32", tmp2, 1, g), vop("v_xor_b32", tmp2, tmp2, i16), vop("v_lshlrev_b32", tmp2, 4, tmp2),
          vop("v_xor_b32", V(31), 128, tmp2)]
    for pc in range(8):
        b += [vop("v_add_u32", vWD2[pc], tmp, tmp2 if pc % 2 == 0 else V(31)), vop("v_add_u32", vWD2[pc], pc * 8192 - (pc & 3) * 1024, vWD2[pc])]
    b += [salu("s_lshl_b32", t0, sWAVE, 21), salu("s_lshl_b32", t1, ct, 8), salu("s_add_u32", t0, t0, t1), salu("s_sub_u32", t2, 2097152, t1)]
    srd(b, SRD_W2, KP(4), t0, t2)
    b.append(smov(sW2, 0))
    for ks in range(CFG.get('w2pre', 2)):
        for c, ins in ld_w2(ks, ks): b.append(ins)
    b += [salu("s_lshl_b32", t0, sBLK, 3), salu("s_add_u32", t0, t0, sB),
          salu("s_lshl_b32", t2, t0, 1), salu("s_add_u32", t2, t2, rho2), salu("s_lshl_b32", t2, t2, 2), salu("s_add_u32", t2, t2, sWAVE), smul(t2, t2, 229376)]
    srd(b, SRD_O2, KP(12), t2, 229376)
    b += [smov(sO2, 0), salu("s_lshl_b32", t0, t0, 11), salu("s_lshl_b32", t1, sWAVE, 9), salu("s_add_u32", t0, t0, t1), salu("s_add_u32", sSLOT, t0, 4096)]
    b += [smul(t0, sB, 224), smul(t1, rho2, 112), salu("s_add_u32", t0, t0, t1), salu("s_lshl_b32", t0, t0, 12),
          salu("s_lshl_b32", t1, sBLK, 11), salu("s_add_u32", t0, t0, t1), salu("s_lshl_b32", t1, ct, 8), salu("s_add_u32", t0, t0, t1)]
    srd(b, SRD_C, KP(10), t0, 111 * 4096 + 256)
    b += [vop("v_and_b32", tmp, 1, g), vop("v_lshlrev_b32", tmp, 1, tmp), vop("v_lshrrev_b32", tmp2, 1, g), vop("v_or_b32", tmp, tmp, tmp2),
          vop("v_lshlrev_b32", tmp, 4, tmp), vop("v_lshl_add_u32", tmp, i16, 12, tmp), salu("s_lshl_b32", t0, sWAVE, 6), vop("v_add_u32", vC, t0, tmp)]
    b += [vop("v_bfe_u32", r_, lane, 2, 2), vop("v_and_b32", c_, 3, lane),
          vop("v_lshl_add_u32", tmp, g, 2, r_), vop("v_lshlrev_b32", tmp, 8, tmp), vop("v_lshl_add_u32", tmp, c_, 3, tmp), vop("v_add_u32", tmp, sMA, tmp),
          vop("v_and_b32", g, 1, g), vop("v_lshl_add_u32", g, g, 2, r_), salu("s_lshl_b32", t0, sWAVE, 1), vop("v_xor_b32", g, t0, g), vop("v_lshlrev_b32", g, 5, g)]
    for n in range(8): b += [vop("v_xor_b32", vWA2[n], n * 32, g), vop("v_add_u32", vWA2[n], tmp, vWA2[n])]
    for n in range(4): b += [salu("s_xor_b32", t0, sWAVE, n), smul(t0, t0, 40960), vop("v_add_u32", vR[n], t0, vOD[0])]
    b += [vop("v_lshlrev_b32", tmp, 7, c_), smov(sCNT, "0x200000")]
    for r in range(32, 256, 2): b.append(vop("v_mov_b64", V(r, 2), 0))
    b.append(waitvm(('W2', 0)))
    for n in range(8):
        for h in range(2): b.append(dsr("ds_read_b64_tr_b16", FA(n)[2*h:2*h+2], vWA2[n], h * 4096))
    b = p.block("poll")
    b += [label("L_poll"), vld("buffer_load_dword", tmp2, tmp, SRD_F, sSLOT, 0, "sc1"), waitall(), vop("v_cmp_ne_u32", 'vcc', sNON, tmp2),
          salu("s_sub_u32", sCNT, sCNT, 1), scmp("s_cmp_eq_u32", sCNT, 0), br("s_cbranch_scc1", "L_go"),
          Ins("s_cbranch_vccz L_go", 'br', r=[('vcc', 0)]), raw(f"s_sleep {CFG['sleep']}"), br("s_branch", "L_poll")]
    b = p.block("op_pro")
    b.append(label("L_go"))
    stamp(b, 8)
    seq = ld_o2(0, 0)
    for ks in range(1, 4):
        if ks >= CFG.get('w2pre', 2): seq += ld_w2(ks, ks)
        if ks < 3: seq += ld_o2(ks, ks)
    for c, ins in seq: b.append(ins)
    b.append(smov(sCNT, 7))

def op_step(b, s, srel, both=False):
    gaps = [[] for _ in range(56)]
    used = []
    w = waitvm(('W2', srel + 1))
    if both:
        w.need.append(('W2', srel + 2))
        for n in range(8):
            used.append(7 * n + 9 if n < 7 else 53)
            for h in range(2): gaps[used[-1]].append(dsr("ds_read_b64_tr_b16", FA31(n)[2*h:2*h+2], vWA2[n], ((s + 2) & 3) * 8192 + h * 4096))
    gaps[5].append(w)
    for n in range(8):
        for h in range(2): gaps[7 * n + 6].append(dsr("ds_read_b64_tr_b16", FA(n)[2*h:2*h+2], vWA2[n], ((s + 1) & 3) * 8192 + h * 4096))
    seq = []
    if s + 3 <= 31: seq += ld_o2(s + 3, srel + 3)
    if s + 4 <= 31:
        seq += ld_w2(s + 4, srel + 4)
        gaps[4].append(waitlgkm0())
    free = [g for g in range(7, CFG['op_hi']) if g % 7 != 6 and g not in used]
    place(gaps, seq, free, 5, 56)
    for j in range(56):
        n, qt = divmod(j, 7)
        b.append(mfma(ACC2(n, qt), FA(n), FB(s & 3, qt), ACC2(n, qt)))
        b += gaps[j]

def oproj(p):
    b = p.block("op_loop")
    b.append(label("L_op"))
    for s in range(4): op_step(b, s, s)
    b += [salu("s_sub_u32", sCNT, sCNT, 1), scmp("s_cmp_lg_u32", sCNT, 0), br("s_cbranch_scc1", "L_op")]
    b = p.block("op_tail")
    op_step(b, 28, 28); op_step(b, 29, 29, both=True)
    T = lambda m: ACC2(2 + m // 7, m % 7)
    gaps = [[] for _ in range(112)]
    gaps[4].append(waitlgkm0())
    sent, g = 0, 8
    while g < 112 and sent < 40:
        if 14 * (sent // 7) + 2 * (sent % 7) + 1 + 6 <= g:
            gaps[g].append(dsw("ds_write_b128", vR[0], T(sent), sent * 1024)); sent += 1; g += CFG.get('wsp', 3)
        else: g += 1
    for j in range(112):
        pos, r = divmod(j, 14); qt, k = divmod(r, 2); n = (2, 3, 4, 5, 6, 7, 0, 1)[pos]
        b.append(mfma(ACC2(n, qt), FA31(n) if k else FA(n), FB((30 + k) & 3, qt), ACC2(n, qt)))
        b += gaps[j]
    stamp(b, 9)
    own = [ACC2(m // 7, m % 7) for m in range(14)]
    for m in range(sent, 40): b.append(dsw("ds_write_b128", vR[0], T(m), m * 1024))
    b += [waitlgkm0(), bar()]
    def add(dst, src):
        for r in range(4): b.append(vop("v_add_f32", dst[r:r+1], dst[r:r+1], src[r:r+1]))
    for m in range(40): b.append(dsr("ds_read_b128", T(m), vR[1 + m // 14], m * 1024))
    for m in range(2): add(own[m], T(m))
    for m in range(2): b.append(dsw("ds_write_b128", vR[1], T(40 + m), m * 1024))
    for m in range(2, 40): add(own[m % 14], T(m))
    b += [waitlgkm0(), bar()]
    for m in range(2): b.append(dsr("ds_read_b128", T(40 + m), vR[2], m * 1024))
    out = [T(qt) for qt in range(7)]
    def fin(qt):
        a0, a1, o = own[qt], own[7 + qt], out[qt]
        return [vop("v_cvt_pk_bf16_f32", o[0:1], a0[0:1], a0[1:2]), vop("v_cvt_pk_bf16_f32", o[1:2], a0[2:3], a0[3:4]),
                vop("v_cvt_pk_bf16_f32", o[2:3], a1[0:1], a1[1:2]), vop("v_cvt_pk_bf16_f32", o[3:4], a1[2:3], a1[3:4])]
    def fin2(qt):
        o = out[qt]
        return [perm("v_permlane16_swap_b32", o[0:1], o[2:3]), perm("v_permlane16_swap_b32", o[1:2], o[3:4]),
                smov(sT[qt % 2], qt * 65536), vst("buffer_store_dwordx4", o, vC, SRD_C, sT[qt % 2], 0, CFG['out_flags'])]
    for qt in range(5): b += fin(qt)
    for qt in range(5): b += fin2(qt)
    for m in range(2): add(own[12 + m], T(40 + m))
    for qt in (5, 6): b += fin(qt)
    for qt in (5, 6): b += fin2(qt)
    stamp(b, 10)
    if CFG['stamps']:
        b.append(waitall())
        stamp(b, 11)
        b += [salu("s_add_u32", S(40), S(60), "0x4000000"), Ins("s_addc_u32 s41, s61, 0", 'salu', w=S(41), r=S(61)),
              smov(S(42), "0x200000"), smov(S(43), "0x20000"),
              salu("s_lshl_b32", sT[0], S(2), 2), salu("s_add_u32", sT[0], sT[0], sWAVE), salu("s_lshl_b32", sT[0], sT[0], 6)]
        if CFG['trace']:
            b += [vop("v_and_b32", V(2), 63, V(0)), vop("v_lshlrev_b32", V(2), 2, V(2)), salu("s_lshl_b32", sT[1], sT[0], 2), salu("s_add_u32", sT[1], sT[1], "0x100000"),
                  vop("v_accvgpr_read_b32", V(3), A(240)), vst("buffer_store_dword", V(3), V(2), S(40, 4), sT[1], 0)]
        for n in range(16): b += [vop("v_mov_b32", V(8 + n), S(80 + n))]
        b += [vop("v_mov_b32", V(2), 0), setexec(1)]
        for n in range(4): b.append(vst("buffer_store_dwordx4", V(8 + 4 * n, 4), V(2), S(40, 4), sT[0], 16 * n))
    b += [label("L_end"), raw("s_endpgm")]

def maxpass(p):
    b = p.block("max_pre")
    b.append(label("L_maxpass"))
    b += [smov(sPASS, 1), smov(sCNT, 32), smov(sKV, 0), bar()]
    for t in range(7): b.append(vop("v_mov_b32", vL[t], "0xff800000"))
    b = p.block("max_loop")
    b.append(label("L_maxl"))
    for pp in range(8):
        b += [salu("s_add_u32", M0, sMK, pp * 1024), dma(vKD[pp & 1], SRD_KV, sKV, 0, CFG['kv_flags']), salu("s_add_u32", sKV, sKV, sC1K)]
    b += [waitall(), bar()]
    for f in range(8): b.append(dsr("ds_read_b128", KF(f), vKA[f & 3], (f >> 2) * 4096))
    b += [waitlgkm0(), bar()]
    for t in range(7):
        s = SB(t & 1)
        for kt in range(2):
            for ds in range(4):
                d = s[4*kt:4*kt+4]
                b.append(mfma(d, KF(4 * kt + ds), QF(t, ds), 0 if ds == 0 else d))
        for n in range(0, 8, 2): b.append(vop("v_max3_f32", vL[t], vL[t], s[n:n+1], s[n+1:n+2]))
    b += [salu("s_sub_u32", sCNT, sCNT, 1), scmp("s_cmp_lg_u32", sCNT, 0), br("s_cbranch_scc1", "L_maxl")]
    b = p.block("max_post")
    lane_reduce(b, vL, [V(32 + t) for t in range(7)], "v_max_f32")
    for t in range(7):
        for r in NEGM(t): b.append(vop("v_sub_f32", [r], 0, vL[t]))
    b.append(smov(sKV, 0))
    for tile in range(4):
        for c, ins in kv_ops(tile): b.append(ins)
    for t in range(7): b.append(vop("v_mov_b32", vL[t], 0))
    if CFG['trace']: b.append(smov(sTRI, 32))
    b += [waitvm(('P', 7)), bar()]
    for f in range(8): b.append(dsr("ds_read_b128", KF(f), vKA[f & 3], (f >> 2) * 4096))
    b.append(smov(sCNT, 7))
    for G in range(-8, 0): b.append(at_mfma(G))
    b.append(br("s_branch", "L_at"))

def build(cfg=None):
    CFG.clear(); CFG.update(DEFAULT); CFG.update(cfg or {})
    p = Program()
    prologue(p); qproj(p); attention(p); check_store_handoff(p); oproj(p); maxpass(p)
    E = lambda *n: [(x, {}) for x in n]
    main = E("pro", "ep1", "pro2", "ep2", "pro3") + [("qp_loop", {'W': 4 * k, 'X': 2 * k}) for k in range(7)] + E("qp_tail", "tagspin", "tagspin", "qp_tail2", "pub", "qp_tail3")
    at = E("at_entry") + [("at_loop", {'P': CFG['ng'] * k, 'T': 32 * k}) for k in range(7)] + E("at_tail", "check")
    fb = E("max_pre", "max_loop", "max_loop", "max_post")
    st = E("store", "st_slow", "flag0") if CFG['local'] else E("store", "flag1")
    rest = E("handoff", "poll", "poll", "op_pro") + [("op_loop", {'W2': 4 * k, 'O2': 4 * k}) for k in range(7)] + E("op_tail")
    drop = lambda tr, *n: [x for x in tr if x[0] not in n]
    fast = lambda tr: [({'st_slow': 'st_fast', 'flag0': 'flag1'}.get(x[0], x[0]), x[1]) for x in tr]
    traces = []
    for body in (main + at + st + rest, main + at + fb + at + st + rest):
        for f in ((lambda t: t), fast) if CFG['local'] else ((lambda t: t),):
            for d in ((), ('ep1', 'ep2', 'pub', 'flag0', 'flag1'), ('tagspin',), ('tagspin', 'ep1', 'ep2'), ('tagspin', 'ep1', 'ep2', 'pub', 'flag0', 'flag1')):
                traces.append(drop(f(body), *d))
    for tr in traces: p.insert_waits(tr)
    n = 0
    for tr in traces: n += p.fix_hazards(tr, verbose=CFG.get('verbose'))
    return p, n
```

```python
from core import *
import atpat, struct

def f2u(x): return struct.unpack("<I", struct.pack("<f", x))[0]
RING = lambda r: r * 40960
DEFAULT = dict(kv_flags="nt", x_flags="", w_flags="", o_flags="sc1", o2_flags="sc1", w2_flags="", out_flags="", early_flags="", pf_wo_flags="",
               stamps=False, trace=False, local=False, thr=3, thr_tail=None, pat='PAT2', ne=2, pf0=6, pfs=0, kfill=5, ng=32, sleep=1, op_hi=52, opm=True,
               wo_gaps=(29 * 112 + 52, 30 * 112 + 14), tlb=0)
CFG = dict(DEFAULT)
M0 = 'm0'
FLAGS = 0x2000000
OOB = "0x40000000"
SRD_X, SRD_W, SRD_KV, SRD_F, SRD_O = S(4, 4), S(8, 4), S(12, 4), S(16, 4), S(20, 4)
SRD_O2, SRD_W2, SRD_C = S(4, 4), S(8, 4), S(20, 4)
sWAVE, sHH, sRHO = S(24), S(25), S(26)
sX, sW, sKV = S(27), S(28), S(29)
sO2, sW2 = S(27), S(28)
sMX, sMW, sMK, sMA = S(30), S(31), S(32), S(33)
sCNT, sPASS = S(34), S(35)
KP = lambda i: S(36 + 2 * i, 2)
sSCALE = S(62)
sC7F, sC1K = S(63), S(75)
sT = [S(64 + i) for i in range(5)]
sKH, sKO, sDH, sDO = S(69), S(70), S(71), S(76)
sNON, sXW = S(71), S(76)
sBLK, sB, sHP = S(72), S(73), S(74)
sWOP, sSLOT, sXCC, sFAST, sTRI, sPM = S(77), S(78), S(79), S(97), S(96), S(69)
vWA = [V(1 + i) for i in range(8)]
vXA = [V(9), V(10)]
vKD = [V(13), V(14)]
vTMP = [V(15), V(16)]
vXD = [V(17 + i) for i in range(7)]
vWD = [V(24 + i) for i in range(4)]
vB = [V(28), V(29), V(30), V(31)]
ACC = lambda dt, qt: V(32 + (qt * 8 + dt) * 4, 4)
QA = lambda dt: A(176 + 4 * dt, 4)
QB = lambda buf, qt: A((208 if buf == 0 else 0) + 4 * qt, 4)
QA31 = lambda dt: A(28 + 4 * dt, 4)
QB31 = lambda qt: A(236 + 4 * qt, 4) if qt < 5 else (A(60, 4) if qt == 5 else A(160, 4))
vKA = [V(1 + i) for i in range(4)]
vVA = [V(5 + i) for i in range(8)]
vL = [V(17 + i) for i in range(7)]
PB = lambda buf: V(24 + 4 * buf, 4)
SB = lambda buf: V(32 + 8 * buf, 8)
NEGM = lambda t: V(48 + 4 * t, 4)
def OT(t, dt): return V(96 + 32 * t + 4 * dt, 4) if t < 5 else A(32 * (t - 5) + 4 * dt, 4)
QF = lambda t, ds: A(64 + 16 * t + 4 * ds, 4)
KF = lambda f: A(176 + 4 * f, 4)
VF = lambda dt: A(208 + 4 * dt, 4)
vLN, vDUM, vXC, vXO = V(88), V(89), V(80), V(81)
vWA2 = [V(1 + i) for i in range(8)]
vWD2 = [V(9 + i) for i in range(8)]
vOD = [V(17), V(18)]
vR = [V(19 + i) for i in range(4)]
vC = V(23)
ACC2 = lambda n, qt: V(32 + (n * 7 + qt) * 4, 4)
FA = lambda n: A(4 * n, 4)
FA31 = lambda n: A(144 + 4 * n, 4)
FB = lambda buf, qt: A(32 + 28 * buf + 4 * qt, 4)

vop = valu
def smul(d, a, b): return salu("s_mul_i32", d, a, b, scc=False)
def csel(d, a, b): return Ins(f"s_cselect_b32 {op(d)}, {op(a)}, {op(b)}", 'salu', w=regs_of(d), r=regs_of(a, b) + [('scc', 0)])
def setexec(v): return raw(f"s_mov_b64 exec, {v}", 'salu', w=[('exec', 0)])
def srd(b, dst, ptr, off, size):
    b.append(salu("s_add_u32", [dst[0]], [ptr[0]], off))
    b.append(Ins(f"s_addc_u32 {rt([dst[1]])}, {rt([ptr[1]])}, 0", 'salu', w=[dst[1], ('scc', 0)], r=[ptr[1], ('scc', 0)]))
    b.append(smov([dst[2]], size)); b.append(smov([dst[3]], "0x20000"))
def stamp(b, n):
    if CFG['stamps']:
        b += [raw("s_memrealtime s[100:101]"), waitlgkm0(), smov(S(80 + n), S(100))]
        if n in CFG.get('cyc', ()): b += [raw("s_memtime s[98:99]"), waitlgkm0(), smov(S(92 + CFG['cyc'].index(n)), S(98))]
def thr(n): return Ins(f"s_waitcnt vmcnt({n})", 'thr', tag=n)
def touch(dst, voff, srd_, soff, fl=""):
    i = vld("buffer_load_dword", dst, voff, srd_, soff, 0, fl); i.w = []
    return i
def place(gaps, seq, free, lo, hi):
    ng = sum(c == 'G' for c, _ in seq)
    gpos = [free[(n * len(free)) // ng] for n in range(ng)] if ng else []
    assert len(set(gpos)) == ng, (ng, len(free))
    n = 0
    for c, ins in seq:
        if c == 'G': gaps[gpos[n]].append(ins); n += 1
        elif c == 'T': gaps[gpos[n]].append(ins)
        else:
            prev = gpos[n - 1] if n else lo
            nxt = gpos[n] if n < ng else hi
            if prev + 1 < nxt:
                gg = gaps[nxt - 1 if nxt < hi else prev + 1]
                k = 0
                while k < len(gg) and gg[k].kind in ('salu', 'waitvm', 'waitlgkm0', 'bar'): k += 1
                gg.insert(k, ins)
            else: gaps[prev].append(ins)

def prologue(p):
    b = p.block("pro")
    b += [scmp("s_cmp_ge_u32", S(2), 256), br("s_cbranch_scc1", "L_end")]
    stamp(b, 0)
    b += [raw("s_load_dwordx16 s[36:51], s[0:1], 0", w=S(36, 16)), raw("s_load_dwordx8 s[52:59], s[0:1], 64", w=S(52, 8)),
          raw("s_load_dwordx2 s[60:61], s[0:1], 96", w=S(60, 2))]
    lane, i16, g, r_, c_ = V(28), V(29), V(30), V(31), V(11)
    tmp, tmp2 = V(12), V(1)
    b += [vop("v_lshrrev_b32", tmp, 6, V(0)), vop("v_and_b32", lane, 63, V(0)), vop("v_readfirstlane_b32", sWAVE, tmp),
          vop("v_and_b32", i16, 15, lane), vop("v_lshrrev_b32", g, 4, lane)]
    b += [salu("s_lshr_b32", sHH, sWAVE, 1), salu("s_and_b32", sRHO, sWAVE, 1)]
    j_, t0, t1, t2, t3 = sT
    b += [salu("s_and_b32", t0, S(2), 7), salu("s_lshr_b32", j_, S(2), 3), salu("s_lshr_b32", sBLK, t0, 2)]
    if CFG['local']:
        b += [salu("s_and_b32", sB, t0, 3), salu("s_lshl_b32", sB, sB, 1), salu("s_and_b32", t1, j_, 1), salu("s_add_u32", sB, sB, t1), salu("s_lshr_b32", sHP, j_, 1)]
    else:
        b += [salu("s_and_b32", sB, t0, 1), salu("s_lshl_b32", sB, sB, 2), salu("s_and_b32", t1, j_, 3), salu("s_add_u32", sB, sB, t1),
              salu("s_bfe_u32", sHP, t0, "0x10001"), salu("s_lshl_b32", sHP, sHP, 3), salu("s_lshr_b32", t1, j_, 2), salu("s_add_u32", sHP, sHP, t1)]
    b += [salu("s_lshl_b32", sSLOT, sBLK, 3), salu("s_add_u32", sSLOT, sSLOT, sB), salu("s_lshl_b32", sSLOT, sSLOT, 4), salu("s_add_u32", sSLOT, sSLOT, sHP)]
    b += [salu("s_lshl_b32", sWOP, j_, 2), salu("s_and_b32", t1, S(2), 3), salu("s_add_u32", sWOP, sWOP, t1), salu("s_lshl_b32", sWOP, sWOP, 2),
          salu("s_add_u32", sWOP, sWOP, sWAVE), salu("s_lshl_b32", sWOP, sWOP, 14)]
    b += [smul(t0, sHH, 40960), salu("s_lshl_b32", t1, sRHO, 12), salu("s_add_u32", sMW, t0, t1), salu("s_add_u32", sMW, sMW, RING(2) + 8192),
          smul(t2, sRHO, 7168), salu("s_add_u32", sMX, t0, t2), salu("s_add_u32", sMX, sMX, 8192),
          smul(t2, sRHO, RING(2)), salu("s_add_u32", sMK, t0, t2), smul(sMA, sWAVE, 40960)]
    b += [salu("s_lshl_b32", t3, sRHO, 4), vop("v_add_u32", tmp, t3, g), vop("v_lshlrev_b32", tmp, 13, tmp),
          salu("s_lshl_b32", t3, sHH, 8), vop("v_add_u32", tmp, t3, tmp),
          vop("v_lshlrev_b32", tmp2, 1, g), vop("v_xor_b32", tmp2, tmp2, i16), vop("v_lshlrev_b32", V(2), 4, tmp2), vop("v_xor_b32", V(3), 128, V(2))]
    for pp in range(4):
        b += [vop("v_add_u32", vWD[pp], tmp, V(2) if pp < 2 else V(3)), vop("v_add_u32", vWD[pp], pp * 32768 - pp * 1024, vWD[pp])]
    b += [vop("v_lshrrev_b32", tmp, 3, lane), smul(t2, sHH, 112), smul(t3, sRHO, 56), salu("s_add_u32", t2, t2, t3),
          vop("v_add_u32", tmp, t2, tmp), vop("v_lshlrev_b32", tmp, 11, tmp),
          vop("v_and_b32", tmp2, 7, lane), vop("v_xor_b32", tmp2, tmp2, g), salu("s_lshl_b32", t3, sRHO, 2),
          vop("v_xor_b32", tmp2, t3, tmp2), vop("v_lshlrev_b32", V(2), 4, tmp2), vop("v_xor_b32", V(3), 64, V(2))]
    for pp in range(7):
        b += [vop("v_add_u32", vXD[pp], tmp, V(2) if pp % 2 == 0 else V(3)), vop("v_add_u32", vXD[pp], pp * 16384 - (pp & 3) * 1024, vXD[pp])]
    b += [smov(sX, 0), smov(sW, 0), vop("v_mov_b32", vTMP[0], 0), waitlgkm0()]
    b.append(scmp("s_cmp_eq_u32", sBLK, 0))
    for i in (3, 0, 1, 2, 4):
        for hl in range(2): b.append(csel(S(36 + 2 * i + hl), S(36 + 2 * i + hl), S(46 + 2 * i + hl)))
    b += [salu("s_lshl_b32", t0, sHP, 9), salu("s_sub_u32", t2, 8388608, t0)]; srd(b, SRD_W, KP(3), t0, t2)
    b += [smul(t0, sB, 458752)]; srd(b, SRD_X, KP(0), t0, 458752)
    def ldx(pair):
        for pp in range(7):
            if pp % 4 == 0: b.append(salu("s_add_u32", M0, sMX, (pair & 1) * 18432 + (pp >> 2) * 4096))
            b.append(dma(vXD[pp], SRD_X, sX, (pp & 3) * 1024, CFG['x_flags'], tag=('X', pair)))
        b.append(salu("s_add_u32", sX, sX, 128))
    def ldw(ks):
        b.append(salu("s_add_u32", M0, sMW, (ks & 3) * 8192))
        for pp in range(4): b.append(dma(vWD[pp], SRD_W, sW, pp * 1024, CFG['w_flags'], tag=('W', ks)))
        b.append(salu("s_add_u32", sW, sW, 262144))
    ldw(0); ldx(0)
    srd(b, SRD_F, KP(12), FLAGS, 4096 + 256 * 128)
    b += [salu("s_or_b32", t0, sSLOT, sWAVE), scmp("s_cmp_lg_u32", t0, 0), br("s_cbranch_scc1", "L_ep1")]
    b = p.block("ep1")
    b.append(vld("buffer_load_dword", vTMP[1], vTMP[0], SRD_F, 0, 0, "sc1"))
    b = p.block("pro2")
    b.append(label("L_ep1"))
    ldw(1); ldx(1); ldw(2); ldw(3)
    b += [vop("v_and_b32", tmp2, 2, g), vop("v_lshlrev_b32", tmp2, 1, tmp2), vop("v_and_b32", V(2), 1, g), vop("v_or_b32", tmp2, tmp2, V(2)),
          vop("v_lshlrev_b32", V(2), 1, g), scmp("s_cmp_eq_u32", sRHO, 0), Ins("s_cselect_b64 vcc, -1, 0", 'salu', w=[('vcc', 0)], r=[('scc', 0)]),
          vop("v_cndmask_b32", tmp2, V(2), tmp2, 'vcc'), vop("v_xor_b32", tmp2, tmp2, i16), vop("v_lshlrev_b32", tmp2, 4, tmp2),
          vop("v_lshl_add_u32", vKD[0], g, 8, tmp2), vop("v_xor_b32", vKD[1], 128, vKD[0])]
    for hl in range(2): b.append(csel(S(38 + hl), S(38 + hl), S(40 + hl)))
    b += [salu("s_lshl_b32", t0, sB, 5), salu("s_lshl_b32", t2, sHP, 1), salu("s_add_u32", t0, t0, t2), salu("s_add_u32", t0, t0, sHH), salu("s_lshl_b32", t0, t0, 18)]
    srd(b, SRD_KV, KP(1), t0, 262144)
    b += [salu("s_lshr_b32", t0, sSLOT, 4), salu("s_lshl_b32", t0, t0, 1), salu("s_add_u32", t0, t0, sRHO), salu("s_lshl_b32", t0, t0, 5),
          salu("s_lshl_b32", t2, sHP, 1), salu("s_add_u32", t0, t0, t2), salu("s_add_u32", t0, t0, sHH), smul(t0, t0, 28672)]
    srd(b, SRD_O, KP(12), t0, 28672)
    b += [Ins("s_getreg_b32 s79, hwreg(HW_REG_XCC_ID, 0, 4)", 'salu', w=sXCC), smov(sPASS, 0), smov(sSCALE, hex(f2u(1.4426950408889634 / 128 ** 0.5))),
          smov(sC7F, "0x7fff"), smov(sC1K, 1024)]
    if CFG['tlb']:
        T4, pg = S(64, 4), V(35)
        b += [vop("v_lshlrev_b32", pg, 20, lane), touch(A(255), pg, SRD_KV, 0), touch(A(255), pg, SRD_W, 0), touch(A(255), pg, SRD_F, 0)]
        srd(b, T4, KP(4), 0, 8388608); b.append(touch(A(255), pg, T4, 0))
        b += [salu("s_lshr_b32", t3, sSLOT, 4), smul(t3, t3, 1835008)]; srd(b, T4, KP(12), t3, 1835008); b.append(touch(A(255), pg, T4, 0))
        b += [smov(t3, 1835004), touch(A(255), vTMP[0], T4, t3)]
        b += [smul(t3, sB, 917504)]; srd(b, T4, KP(10), t3, 917504); b.append(touch(A(255), pg, T4, 0))
        b += [smov(t3, 917500), touch(A(255), vTMP[0], T4, t3)]
        srd(b, T4, KP(11), 0, 256); b.append(touch(A(255), vTMP[0], T4, 0))
    b += [vop("v_lshrrev_b32", tmp, 1, i16), vop("v_xor_b32", tmp, tmp, g), vop("v_lshlrev_b32", tmp, 4, tmp), vop("v_lshlrev_b32", tmp2, 7, i16),
          smul(t0, sRHO, 40960), salu("s_add_u32", t0, t0, 8192),
          vop("v_add_u32", tmp2, t0, tmp2), vop("v_add_u32", vXA[0], tmp2, tmp), vop("v_xor_b32", tmp, 64, tmp), vop("v_add_u32", vXA[1], tmp2, tmp)]
    a_, b_ = V(33), V(34)
    b += [vop("v_bfe_u32", r_, lane, 2, 2), vop("v_and_b32", c_, 3, lane), smul(t0, sHH, 40960), salu("s_add_u32", t1, t0, RING(2) + 8192),
          vop("v_lshl_add_u32", tmp, g, 3, r_), vop("v_lshlrev_b32", tmp, 8, tmp), vop("v_lshl_add_u32", tmp, c_, 3, tmp), vop("v_add_u32", tmp, t1, tmp),
          vop("v_and_b32", a_, 1, g), vop("v_lshl_add_u32", a_, a_, 2, r_), vop("v_lshlrev_b32", a_, 5, a_)]
    for dt in range(8): b += [vop("v_xor_b32", vWA[dt], dt * 32, a_), vop("v_add_u32", vWA[dt], tmp, vWA[dt])]
    b += [vop("v_lshl_add_u32", a_, g, 2, r_), vop("v_lshlrev_b32", a_, 8, a_), vop("v_lshl_add_u32", a_, c_, 3, a_), salu("s_add_u32", t1, t0, RING(2)),
          vop("v_add_u32", vB[3], t1, a_),
          vop("v_and_b32", a_, 1, g), vop("v_lshlrev_b32", a_, 1, a_), vop("v_lshrrev_b32", b_, 1, g), vop("v_or_b32", a_, a_, b_),
          vop("v_and_b32", b_, 1, i16), vop("v_xor_b32", a_, a_, b_), vop("v_and_b32", b_, 6, i16), vop("v_lshlrev_b32", b_, 1, b_), vop("v_xor_b32", a_, a_, b_),
          vop("v_lshlrev_b32", vB[0], 4, a_), vop("v_lshlrev_b32", b_, 8, i16), vop("v_add_u32", vB[1], t0, b_)]
    for r in range(32, 256, 2): b.append(vop("v_mov_b64", V(r, 2), 0))
    b += [smov(sCNT, 7), smov(sKH, 0), smov(sDH, 0), smov(sKO, CFG['pf0'] * 8192 if CFG['pfs'] else OOB), smov(sDO, CFG['pfs'] * 8192),
          salu("s_or_b32", t0, sSLOT, sWAVE), scmp("s_cmp_lg_u32", t0, 0), br("s_cbranch_scc1", "L_ep2")]
    b = p.block("ep2")
    srd(b, S(64, 4), KP(11), 0, 256)
    b += [vop("v_add_u32", vTMP[1], 1, vTMP[1]), vop("v_max_u32", vTMP[1], 1, vTMP[1]), setexec(1),
          vst("buffer_store_dword", vTMP[1], vTMP[0], SRD_F, 0, 0, "sc1"), vst("buffer_store_dword", vTMP[1], vTMP[0], S(64, 4), 0, 0, "sc1"), setexec(-1)]
    b = p.block("pro3")
    b.append(label("L_ep2"))
    b += [waitvm(('X', 0), ('W', 0)), bar()]
    for qt in range(7): b.append(dsr("ds_read_b128", QB(0, qt), vXA[0], qt * 2048))
    for dt in range(8):
        for h in range(2): b.append(dsr("ds_read_b64_tr_b16", QA(dt)[2*h:2*h+2], vWA[dt], h * 1024))
    stamp(b, 1)

def kv_ops(tile, thr_=None):
    o = []
    for pp in range(8):
        o += [('S', salu("s_and_b32", sPM, sKV, sC7F)), ('S', salu("s_add_u32", M0, sMK, sPM))]
        if thr_ is not None: o.append(('T', thr(thr_)))
        o += [('G', dma(vKD[pp & 1], SRD_KV, sKV, 0, CFG['kv_flags'], tag=('P', 8 * tile + pp))), ('S', salu("s_add_u32", sKV, sKV, sC1K))]
    return o

A_GAPS = [7 * dt + 6 for dt in range(8)]
D_GAPS = [8, 15, 22, 29, 36, 43, 50]
def qp_step(b, s, srel, kv=None, extra=(), early=None, both=False):
    gaps = [[] for _ in range(56)]
    used = []
    w = waitvm(('W', srel + 1))
    if (s + 1) % 2 == 0: w.need.append(('X', (srel + 1) // 2))
    if both:
        w.need.append(('W', srel + 2))
        for dt, g in enumerate((9, 16, 23, 30, 37, 44, 51, 53)):
            used.append(g)
            for h in range(2): gaps[g].append(dsr("ds_read_b64_tr_b16", QA31(dt)[2*h:2*h+2], vWA[dt], ((s + 2) & 3) * 8192 + h * 1024))
        for qt, g in enumerate((11, 18, 25, 32, 39, 46, 52)):
            used.append(g)
            gaps[g].append(dsr("ds_read_b128", QB31(qt), vXA[1], 18432 + qt * 2048))
    gaps[5] += [w, waitlgkm0()]
    gaps[6].append(bar())
    for dt in range(8):
        for h in range(2): gaps[A_GAPS[dt]].append(dsr("ds_read_b64_tr_b16", QA(dt)[2*h:2*h+2], vWA[dt], ((s + 1) & 3) * 8192 + h * 1024))
    pair, par = (s + 1) >> 1, (s + 1) & 1
    for qt, g in enumerate(D_GAPS):
        gaps[g].append(dsr("ds_read_b128", QB((s + 1) & 1, qt), vXA[par], (pair & 1) * 18432 + qt * 2048))
    seq = []
    if early is not None:
        for n in range(early):
            seq += [('S', salu("s_add_u32", M0, sMK, sKH)), ('G', dma(vKD[n & 1], SRD_KV, sKO, 0, CFG['early_flags'], tag=('P', 7))),
                    ('S', salu("s_add_u32", sKH, sKH, sDH)), ('S', salu("s_add_u32", sKO, sKO, sDO))]
    if s % 2 == 1 and (s + 3) // 2 <= 15:
        pair = (s + 3) // 2
        for pp in range(7):
            if pp % 4 == 0: seq.append(('S', salu("s_add_u32", M0, sMX, (pair & 1) * 18432 + (pp >> 2) * 4096)))
            seq.append(('G', dma(vXD[pp], SRD_X, sX, (pp & 3) * 1024, CFG['x_flags'], tag=('X', (srel + 3) // 2))))
        seq.append(('S', salu("s_add_u32", sX, sX, 128)))
    if s + 4 <= 31:
        seq.append(('S', salu("s_add_u32", M0, sMW, (s & 3) * 8192)))
        for pp in range(4): seq.append(('G', dma(vWD[pp], SRD_W, sW, pp * 1024, CFG['w_flags'], tag=('W', srel + 4))))
        seq.append(('S', salu("s_add_u32", sW, sW, 262144)))
    if kv is not None: seq += kv_ops(kv, CFG['thr_tail'])
    free = [g for g in range(9, 55) if g not in A_GAPS and g not in D_GAPS and g not in used]
    place(gaps, seq, free, 7, 56)
    for g, ins in extra: gaps[g].append(ins)
    for j in range(56):
        dt, qt = divmod(j, 7)
        b.append(mfma(ACC(dt, qt), QA(dt), QB(s & 1, qt), ACC(dt, qt)))
        b += gaps[j]

def conv_ops(qt):
    st = []
    for ds in range(4):
        t0, t1 = ACC(2 * ds, qt), ACC(2 * ds + 1, qt)
        q = QF(qt, ds)
        st.append(([vop("v_mul_f32", [r], sSCALE, [r]) for r in t0 + t1],
                   [vop("v_cvt_pk_bf16_f32", t[n:n+1], t[2*n:2*n+1], t[2*n+1:2*n+2]) for t in (t0, t1) for n in range(2)],
                   [perm("v_permlane16_swap_b32", t0[0:1], t1[0:1]), perm("v_permlane16_swap_b32", t0[1:2], t1[1:2])],
                   [vop("v_accvgpr_write_b32", q[n:n+1], src) for n, src in enumerate((t0[0:1], t0[1:2], t1[0:1], t1[1:2]))]))
    o = []
    for u, k in ((0,0),(1,0),(0,1),(2,0),(1,1),(0,2),(3,0),(2,1),(1,2),(0,3),(3,1),(2,2),(1,3),(3,2),(2,3),(3,3)):
        o += [(16 * qt + 4 * u + 5, i) for i in st[u][k]]
    return o

def qproj(p):
    b = p.block("qp_loop")
    b.append(label("L_qp"))
    for s in range(4): qp_step(b, s, s, early=CFG['ne'] if s % 2 == 0 else None)
    nreal = 8 // (2 * CFG['ne'])
    b += [scmp("s_cmp_eq_u32", sCNT, nreal + 1), csel(sKO, 0, sKO), csel(sDO, 1024, sDO), csel(sDH, 1024, sDH),
          salu("s_sub_u32", sCNT, sCNT, 1), scmp("s_cmp_lg_u32", sCNT, 0), br("s_cbranch_scc1", "L_qp")]
    b = p.block("qp_tail")
    srd(b, S(64, 4), KP(11), 0, 256)
    b += [smov(sKV, 8192), vld("buffer_load_dword", vTMP[1], vTMP[0], S(64, 4), 0, 0, "sc1")]
    qp_step(b, 28, 28)
    b += [vop("v_readfirstlane_b32", sNON, vTMP[1]), smov(sCNT, "0x200000"), scmp("s_cmp_lg_u32", sNON, 0), br("s_cbranch_scc1", "L_tag")]
    b = p.block("tagspin")
    b += [label("L_tagspin"), raw("s_sleep 4"), vld("buffer_load_dword", vTMP[1], vTMP[0], S(64, 4), 0, 0, "sc1"), waitall(), vop("v_readfirstlane_b32", sNON, vTMP[1]),
          salu("s_sub_u32", sCNT, sCNT, 1), scmp("s_cmp_eq_u32", sCNT, 0), br("s_cbranch_scc1", "L_tag"),
          scmp("s_cmp_eq_u32", sNON, 0), br("s_cbranch_scc1", "L_tagspin")]
    b = p.block("qp_tail2")
    b.append(label("L_tag"))
    b += [salu("s_add_u32", sXW, sXCC, 1), salu("s_lshl_b32", sXW, sXW, 24), salu("s_add_u32", sXW, sXW, sNON),
          salu("s_lshl_b32", sSLOT, sSLOT, 7), salu("s_add_u32", sSLOT, sSLOT, 4096), vop("v_mov_b32", vTMP[1], sXW),
          scmp("s_cmp_lg_u32", sWAVE, 0), br("s_cbranch_scc1", "L_nopub")]
    b = p.block("pub")
    b += [setexec(1), vst("buffer_store_dword", vTMP[1], vTMP[0], SRD_F, sSLOT, 4, "sc1"), setexec(-1)]
    b = p.block("qp_tail3")
    b.append(label("L_nopub"))
    qp_step(b, 29, 29, kv=1, both=True)
    gaps = [[] for _ in range(112)]
    gaps[5] += [waitvm(('P', 7)), waitlgkm0()]; gaps[6].append(bar())
    place(gaps, kv_ops(2, CFG['thr_tail']) + kv_ops(3, CFG['thr_tail']), list(range(9, 92)), 7, 112)
    for f in range(8): gaps[96 + 2 * f + 1].append(dsr("ds_read_b128", KF(f), vKA[f & 3], (f >> 2) * 4096))
    q = []
    for ds in range(4): q += [(0, vop("v_xor_b32", vKA[ds], ds * 64, vB[0])), (0, vop("v_add_u32", vKA[ds], vB[1], vKA[ds]))]
    q += [(0, vop("v_lshrrev_b32", vB[0], 4, V(0))), (0, vop("v_and_b32", vB[0], 1, vB[0])), (0, vop("v_bfe_u32", vB[1], V(0), 2, 2)),
          (0, vop("v_lshl_add_u32", vB[0], vB[0], 2, vB[1])), (0, vop("v_lshlrev_b32", vB[0], 5, vB[0]))]
    for dt in range(8): q += [(0, vop("v_xor_b32", vVA[dt], dt * 32, vB[0])), (0, vop("v_add_u32", vVA[dt], vB[3], vVA[dt]))]
    for t in range(7): q.append((0, vop("v_mov_b32", vL[t], 0)))
    for qt in range(7):
        q += conv_ops(qt)
        if qt == 1:
            for t in range(7):
                for n in (0, 2): q.append((0, vop("v_mov_b64", NEGM(t)[n:n+2], 0)))
            q += [(0, vop("v_and_b32", vLN, 63, V(0))), (0, vop("v_and_b32", vXO, 15, V(0))), (0, vop("v_lshlrev_b32", vLN, 7, vLN)), (0, vop("v_lshlrev_b32", vXO, 7, vXO))]
    sc = []
    srd(sc, SRD_X, KP(4), 0, 8388608)
    for n, ins in enumerate(sc): gaps[1 + n // 2].append(ins)
    g = 1
    while q and g < 112:
        room = CFG['kfill'] - 2 * sum(i.kind in VM for i in gaps[g]) - sum(i.kind in LG for i in gaps[g])
        while q and room > 0 and q[0][0] <= g:
            gaps[g].append(q.pop(0)[1]); room -= 1
        g += 1
    for j in range(112):
        qt, r = divmod(j, 16); dt, k = divmod(r, 2)
        b.append(mfma(ACC(dt, qt), QA31(dt) if k else QA(dt), QB31(qt) if k else QB(0, qt), ACC(dt, qt)))
        b += gaps[j]
    if CFG['trace']: b += [smov(sTRI, 32), vop("v_mov_b32", V(95), 0), vop("v_and_b32", V(94), 63, V(0))]
    stamp(b, 2)
    if CFG['ng'] != 32 or True: b.append(smov(sCNT, 7))
    stamp(b, 3)
    rest = [i for _, i in q]
    per = (len(rest) + 7) // 8
    for G in range(-8, 0):
        b.append(at_mfma(G))
        b += rest[:per]; rest = rest[per:]

def at_ins(key, i):
    k = key[0]
    if not 0 <= i <= 31: return None
    if k in 'ECA':
        t = int(key[1]); j = int(key[2]); n = 7 * i + t
        s = SB(n & 1)
        if k == 'E': return [trans("v_exp_f32", s[j:j+1], s[j:j+1])]
        if k == 'A': return [vop("v_add_f32", vL[t], vL[t], s[j:j+1])]
        return [vop("v_cvt_pk_bf16_f32", PB(n & 1)[j:j+1], s[2*j:2*j+1], s[2*j+1:2*j+2])]
    if k == 'V':
        dt, h = int(key[1]), int(key[2])
        o = [dsr("ds_read_b64_tr_b16", VF(dt)[2*h:2*h+2], vVA[dt], (i & 3) * 8192 + h * 4096)]
        if CFG['trace'] and key == 'V00' and i > 0:
            o += [vop("v_cmp_eq_u32", 'vcc', sTRI, V(94)), vop("v_mov_b32", V(93), S(100)), salu("s_add_u32", sTRI, sTRI, 1), vop("v_cndmask_b32", V(95), V(95), V(93), 'vcc')]
        return o
    if i + 1 > 31: return None
    if k == 'K':
        f = int(key[1])
        return [dsr("ds_read_b128", KF(f), vKA[f & 3], ((i + 1) & 3) * 8192 + (f >> 2) * 4096)]
    if k == 'W': return [waitvm(('P', 8 * i + 15, 'T'))]
    if k == 'B': return [bar()] + ([raw("s_memrealtime s[100:101]")] if CFG['trace'] else [])
    raise KeyError(key)

def at_mfma(G):
    n, j = divmod(G, 16)
    if j < 8:
        m = n - 1
        if not 0 <= m < 224: return None
        i, t = divmod(m, 7)
        return mfma(OT(t, j), VF(j), PB(m & 1), 0 if i == 0 else OT(t, j))
    m = n + 1
    if not 0 <= m < 224: return None
    i, t = divmod(m, 7)
    kt, ds = divmod(j - 8, 4)
    d = SB(m & 1)[4*kt:4*kt+4]
    return mfma(d, KF(j - 8), QF(t, ds), NEGM(t) if ds == 0 else d)

def at_range(b, g0, g1, pat, gsel, piece):
    pre = {}
    for G in gsel:
        pre.setdefault(G - 2, []).append(salu("s_and_b32", sPM, sKV, sC7F)); pre.setdefault(G - 1, []).append(salu("s_add_u32", M0, sMK, sPM))
        pre.setdefault(G + (2 if G % 112 == 79 else 1), []).insert(0, salu("s_add_u32", sKV, sKV, sC1K))
    for G in range(g0, g1):
        m = at_mfma(G)
        if m is not None: b.append(m)
        b += pre.pop(G, [])
        i, rel = divmod(G, atpat.STEP)
        if G in CFG['wo_gaps']: b += [touch(vDUM, vLN, SRD_X, sWOP, CFG['pf_wo_flags']), salu("s_add_u32", sWOP, sWOP, 8192)]
        if G == 30 * 112 + 52 and CFG['local']:
            b += [salu("s_sub_u32", sT[0], sSLOT, 4096), salu("s_and_b32", sT[0], sT[0], "0xfffff800"), salu("s_add_u32", sT[0], sT[0], 4096),
                  vld("buffer_load_dword", vXC, vXO, SRD_F, sT[0], 4, "sc1")]
        if G in gsel:
            if CFG['thr'] is not None: b.append(thr(CFG['thr']))
            b.append(dma(vKD[(piece - CFG['_par0']) & 1], SRD_KV, sKV, 0, CFG['kv_flags'], tag=('P', piece))); piece += 1
        for key, d in pat[rel]:
            if key[0] in 'GMUY': continue
            ins = at_ins(key, i + d)
            if ins is not None: b += ins
    assert not pre, pre.keys()
    return piece

def attention(p):
    pat, pos, over = atpat.parse(getattr(atpat, CFG['pat']))
    gp = sorted(v % 112 for k, v in pos.items() if k[0] == 'G')
    NG = CFG['ng']
    CFG['_par0'] = 0
    ent = [g for g in gp if g > 80]
    body = [112 * i + g for i in range(1, 6) for g in gp if 120 <= 112 * i + g < 568]
    assert len(body) == 32
    drop = {32: [], 31: [112 * 2 + 27], 30: [112 * 2 + 27, 112 * 4 + 27]}[NG]
    body = [g for g in body if g not in drop]
    n_tail = 256 - 32 - len(ent) - 7 * NG
    tail = [112 * i + g for i in range(29, 31) for g in gp if 112 * i + g >= 3256][:max(0, n_tail)]
    allg = ent + [g + 448 * k for k in range(7) for g in body] + tail
    lead = 10 ** 9
    for n, G in enumerate(allg):
        tile = (32 + n) // 8
        assert G > 112 * (tile - 4) + 80, (n, G)
        if tile <= 31: lead = min(lead, 112 * (tile - 1) + 79 - G)
    CFG['_lead'] = lead
    b = p.block("at_entry")
    b.append(label("L_at"))
    pc = at_range(b, 0, 120, pat, set(ent), 32)
    b = p.block("at_loop")
    b.append(label("L_atl"))
    at_range(b, 120, 568, pat, set(body), pc)
    if NG % 2: b.append(Ins("v_swap_b32 v13, v14", 'valu', w=V(13, 2), r=V(13, 2)))
    b += [salu("s_sub_u32", sCNT, sCNT, 1), scmp("s_cmp_lg_u32", sCNT, 0), br("s_cbranch_scc1", "L_atl")]
    b = p.block("at_tail")
    CFG['_par0'] = (7 * NG) & 1
    at_range(b, 3256, 32 * 112 + 8, pat, set(tail), pc + 7 * NG)
    if (7 * NG) & 1: b.append(Ins("v_swap_b32 v13, v14", 'valu', w=V(13, 2), r=V(13, 2)))
    stamp(b, 4)
    if CFG['trace']: b += [vop("v_accvgpr_write_b32", A(240), V(95))]

def lane_reduce(b, regs, tmps, opname):
    for sw in ("v_permlane16_swap_b32", "v_permlane32_swap_b32"):
        for r, t in zip(regs, tmps): b.append(vop("v_mov_b32", t, r))
        for r, t in zip(regs, tmps): b.append(perm(sw, r, t))
        for r, t in zip(regs, tmps): b.append(vop(opname, r, r, t))

def ld_o2(ks, tag):
    o = [('G', vld("buffer_load_dwordx4", FB(ks & 3, qt), vOD[qt >> 2], SRD_O2, sO2, (qt & 3) * 1024, CFG['o2_flags'], tag=('O2', tag))) for qt in range(7)]
    return o + [('S', salu("s_add_u32", sO2, sO2, 7168))]
def ld_w2(ks, tag):
    o = []
    for pc in range(8):
        if pc % 4 == 0: o.append(('S', salu("s_add_u32", M0, sMA, (ks & 3) * 8192 + (pc >> 2) * 4096)))
        o.append(('G', dma(vWD2[pc], SRD_W2, sW2, (pc & 3) * 1024, CFG['w2_flags'], tag=('W2', tag))))
    return o + [('S', salu("s_add_u32", sW2, sW2, 65536))]

def check_store_handoff(p):
    b = p.block("check")
    tm = [V(32 + 2 * t) for t in range(7)]
    if CFG['local']:
        b += [vop("v_cmp_ne_u32", 'vcc', sXW, vXC), nop(1), salu("s_or_b32", sFAST, 'vcc_lo', 'vcc_hi')]
    lane_reduce(b, vL, tm, "v_add_f32")
    lo, hi, bad = sT[0], sT[1], S(66, 2)
    b += [smov(lo, hex(f2u(2.0 ** -32))), smov(hi, hex(f2u(2.0 ** 32))), raw("s_mov_b64 s[66:67], 0", 'salu', w=bad)]
    for t in range(7):
        b += [vop("v_cmp_nle_f32", 'vcc', lo, vL[t]), vop("v_cmp_nge_f32", S(98, 2), hi, vL[t]), trans("v_rcp_f32", tm[t], vL[t]),
              raw("s_or_b64 s[66:67], s[66:67], vcc", 'salu', w=bad + [('scc', 0)], r=bad + [('vcc', 0)]),
              raw("s_or_b64 s[66:67], s[66:67], s[98:99]", 'salu', w=bad + [('scc', 0)], r=bad + S(98, 2))]
    b += [salu("s_or_b32", sT[0], S(66), S(67)), salu("s_lshl_b32", sT[1], sWAVE, 2), salu("s_add_u32", sT[1], sT[1], RING(0) + 32768),
          vop("v_mov_b32", V(48), sT[1]), vop("v_mov_b32", V(49), sT[0]), vop("v_mov_b32", V(50), RING(0) + 32768),
          dsw("ds_write_b32", V(48), V(49), 0), waitlgkm0(), bar(), dsr("ds_read_b128", V(52, 4), V(50), 0),
          vop("v_and_b32", V(24), 63, V(0)), vop("v_lshlrev_b32", vOD[0], 4, V(24)), vop("v_add_u32", vOD[1], 4096, vOD[0]),
          vop("v_or_b32", V(52), V(52), V(53)), vop("v_or3_b32", V(52), V(52), V(54), V(55)), vop("v_readfirstlane_b32", sT[0], V(52)),
          scmp("s_cmp_eq_u32", sT[0], 0), br("s_cbranch_scc1", "L_store"),
          scmp("s_cmp_eq_u32", sPASS, 0), br("s_cbranch_scc1", "L_maxpass")]
    b = p.block("store")
    b.append(label("L_store"))
    stamp(b, 5)
    lane, i16, g, r_, c_, tmp, tmp2 = V(24), V(25), V(26), V(27), V(28), V(29), V(30)
    def stores(b, flags):
        for t in (5, 0, 6, 1, 2, 3, 4):
            rc = V(32 + 2 * t, 2)
            if t < 5: R = V(96 + 32 * t, 32)
            else:
                R = V(48, 32)
                for n in range(32): b.append(vop("v_accvgpr_read_b32", R[n:n+1], A(32 * (t - 5) + n)))
            for n in range(0, 32, 2): b.append(vop("v_pk_mul_f32", R[n:n+2], R[n:n+2], rc, extra="op_sel_hi:[1,0]"))
            for m in range(4):
                r = R[8*m:8*m+8]
                for n in range(4): b.append(vop("v_cvt_pk_bf16_f32", r[n:n+1], r[2*n:2*n+1], r[2*n+1:2*n+2]))
                off = m * 7168 + t * 1024
                b.append(smov(sT[m % 2], off & ~4095))
                b.append(vst("buffer_store_dwordx4", r[0:4], vOD[0], SRD_O, sT[m % 2], off & 4095, flags, tag=('OST', 0)))
    def publish(b, flags, n):
        stamp(b, 6)
        b += [vop("v_mov_b32", tmp, 0), vop("v_mov_b32", tmp2, sNON), waitvm(('OST', 0)), bar(), scmp("s_cmp_lg_u32", sWAVE, 0), br("s_cbranch_scc1", f"L_noflag")]
        b = p.block(f"flag{n}")
        b += [setexec(1), vst("buffer_store_dword", tmp2, tmp, SRD_F, sSLOT, 0, flags), setexec(-1)]
        return b
    if CFG['local']:
        b += [scmp("s_cmp_eq_u32", sFAST, 0), br("s_cbranch_scc1", "L_stfast")]
        b = p.block("st_slow"); stores(b, CFG['o_flags']); b = publish(b, "sc1", 0); b.append(br("s_branch", "L_noflag"))
        b = p.block("st_fast"); b.append(label("L_stfast")); stores(b, ""); publish(b, CFG.get('flag_fast', ""), 1)
    else:
        stores(b, CFG['o_flags']); publish(b, "sc1", 1)
    b = p.block("handoff")
    b.append(label("L_noflag"))
    stamp(b, 7)
    t0, t1, t2, rho2, ct = sT
    b += [salu("s_and_b32", rho2, sHP, 1), salu("s_lshr_b32", ct, sHP, 1), vop("v_and_b32", i16, 15, lane), vop("v_lshrrev_b32", g, 4, lane)]
    b += [vop("v_lshlrev_b32", tmp, 11, g), vop("v_lshlrev_b32", tmp2, 1, g), vop("v_xor_b32", tmp2, tmp2, i16), vop("v_lshlrev_b32", tmp2, 4, tmp2),
          vop("v_xor_b32", V(31), 128, tmp2)]
    for pc in range(8):
        b += [vop("v_add_u32", vWD2[pc], tmp, tmp2 if pc % 2 == 0 else V(31)), vop("v_add_u32", vWD2[pc], pc * 8192 - (pc & 3) * 1024, vWD2[pc])]
    b += [salu("s_lshl_b32", t0, sWAVE, 21), salu("s_lshl_b32", t1, ct, 8), salu("s_add_u32", t0, t0, t1), salu("s_sub_u32", t2, 2097152, t1)]
    srd(b, SRD_W2, KP(4), t0, t2)
    b.append(smov(sW2, 0))
    for ks in range(CFG.get('w2pre', 2)):
        for c, ins in ld_w2(ks, ks): b.append(ins)
    b += [salu("s_lshl_b32", t0, sBLK, 3), salu("s_add_u32", t0, t0, sB),
          salu("s_lshl_b32", t2, t0, 1), salu("s_add_u32", t2, t2, rho2), salu("s_lshl_b32", t2, t2, 2), salu("s_add_u32", t2, t2, sWAVE), smul(t2, t2, 229376)]
    srd(b, SRD_O2, KP(12), t2, 229376)
    b += [smov(sO2, 0), salu("s_lshl_b32", t0, t0, 11), salu("s_lshl_b32", t1, sWAVE, 9), salu("s_add_u32", t0, t0, t1), salu("s_add_u32", sSLOT, t0, 4096)]
    b += [smul(t0, sB, 224), smul(t1, rho2, 112), salu("s_add_u32", t0, t0, t1), salu("s_lshl_b32", t0, t0, 12),
          salu("s_lshl_b32", t1, sBLK, 11), salu("s_add_u32", t0, t0, t1), salu("s_lshl_b32", t1, ct, 8), salu("s_add_u32", t0, t0, t1)]
    srd(b, SRD_C, KP(10), t0, 111 * 4096 + 256)
    b += [vop("v_and_b32", tmp, 1, g), vop("v_lshlrev_b32", tmp, 1, tmp), vop("v_lshrrev_b32", tmp2, 1, g), vop("v_or_b32", tmp, tmp, tmp2),
          vop("v_lshlrev_b32", tmp, 4, tmp), vop("v_lshl_add_u32", tmp, i16, 12, tmp), salu("s_lshl_b32", t0, sWAVE, 6), vop("v_add_u32", vC, t0, tmp)]
    b += [vop("v_bfe_u32", r_, lane, 2, 2), vop("v_and_b32", c_, 3, lane),
          vop("v_lshl_add_u32", tmp, g, 2, r_), vop("v_lshlrev_b32", tmp, 8, tmp), vop("v_lshl_add_u32", tmp, c_, 3, tmp), vop("v_add_u32", tmp, sMA, tmp),
          vop("v_and_b32", g, 1, g), vop("v_lshl_add_u32", g, g, 2, r_), salu("s_lshl_b32", t0, sWAVE, 1), vop("v_xor_b32", g, t0, g), vop("v_lshlrev_b32", g, 5, g)]
    for n in range(8): b += [vop("v_xor_b32", vWA2[n], n * 32, g), vop("v_add_u32", vWA2[n], tmp, vWA2[n])]
    for n in range(4): b += [salu("s_xor_b32", t0, sWAVE, n), smul(t0, t0, 40960), vop("v_add_u32", vR[n], t0, vOD[0])]
    b += [vop("v_lshlrev_b32", tmp, 7, c_), smov(sCNT, "0x200000")]
    for r in range(32, 256, 2): b.append(vop("v_mov_b64", V(r, 2), 0))
    b.append(waitvm(('W2', 0)))
    for n in range(8):
        for h in range(2): b.append(dsr("ds_read_b64_tr_b16", FA(n)[2*h:2*h+2], vWA2[n], h * 4096))
    b = p.block("poll")
    b += [label("L_poll"), vld("buffer_load_dword", tmp2, tmp, SRD_F, sSLOT, 0, "sc1"), waitall(), vop("v_cmp_ne_u32", 'vcc', sNON, tmp2),
          salu("s_sub_u32", sCNT, sCNT, 1), scmp("s_cmp_eq_u32", sCNT, 0), br("s_cbranch_scc1", "L_go"),
          Ins("s_cbranch_vccz L_go", 'br', r=[('vcc', 0)]), raw(f"s_sleep {CFG['sleep']}"), br("s_branch", "L_poll")]
    b = p.block("op_pro")
    b.append(label("L_go"))
    stamp(b, 8)
    seq = ld_o2(0, 0)
    for ks in range(1, 4):
        if ks >= CFG.get('w2pre', 2): seq += ld_w2(ks, ks)
        if ks < 3: seq += ld_o2(ks, ks)
    for c, ins in seq: b.append(ins)
    b.append(smov(sCNT, 7))

def op_step(b, s, srel, both=False):
    gaps = [[] for _ in range(56)]
    used = []
    w = waitvm(('W2', srel + 1))
    if both:
        w.need.append(('W2', srel + 2))
        for n in range(8):
            used.append(7 * n + 9 if n < 7 else 53)
            for h in range(2): gaps[used[-1]].append(dsr("ds_read_b64_tr_b16", FA31(n)[2*h:2*h+2], vWA2[n], ((s + 2) & 3) * 8192 + h * 4096))
    gaps[5].append(w)
    for n in range(8):
        for h in range(2): gaps[7 * n + 6].append(dsr("ds_read_b64_tr_b16", FA(n)[2*h:2*h+2], vWA2[n], ((s + 1) & 3) * 8192 + h * 4096))
    seq = []
    if s + 3 <= 31: seq += ld_o2(s + 3, srel + 3)
    if s + 4 <= 31:
        seq += ld_w2(s + 4, srel + 4)
        gaps[4].append(waitlgkm0())
    free = [g for g in range(7, CFG['op_hi']) if g % 7 != 6 and g not in used]
    place(gaps, seq, free, 5, 56)
    for j in range(56):
        n, qt = divmod(j, 7)
        b.append(mfma(ACC2(n, qt), FA(n), FB(s & 3, qt), ACC2(n, qt)))
        b += gaps[j]

def oproj(p):
    b = p.block("op_loop")
    b.append(label("L_op"))
    for s in range(4): op_step(b, s, s)
    b += [salu("s_sub_u32", sCNT, sCNT, 1), scmp("s_cmp_lg_u32", sCNT, 0), br("s_cbranch_scc1", "L_op")]
    b = p.block("op_tail")
    op_step(b, 28, 28); op_step(b, 29, 29, both=True)
    T = lambda m: ACC2(2 + m // 7, m % 7)
    gaps = [[] for _ in range(112)]
    gaps[4].append(waitlgkm0())
    sent, g = 0, 8
    while g < 112 and sent < 40:
        if 14 * (sent // 7) + 2 * (sent % 7) + 1 + 6 <= g:
            gaps[g].append(dsw("ds_write_b128", vR[0], T(sent), sent * 1024)); sent += 1; g += CFG.get('wsp', 3)
        else: g += 1
    for j in range(112):
        pos, r = divmod(j, 14); qt, k = divmod(r, 2); n = (2, 3, 4, 5, 6, 7, 0, 1)[pos]
        b.append(mfma(ACC2(n, qt), FA31(n) if k else FA(n), FB((30 + k) & 3, qt), ACC2(n, qt)))
        b += gaps[j]
    stamp(b, 9)
    own = [ACC2(m // 7, m % 7) for m in range(14)]
    for m in range(sent, 40): b.append(dsw("ds_write_b128", vR[0], T(m), m * 1024))
    b += [waitlgkm0(), bar()]
    def add(dst, src):
        for r in range(4): b.append(vop("v_add_f32", dst[r:r+1], dst[r:r+1], src[r:r+1]))
    for m in range(40): b.append(dsr("ds_read_b128", T(m), vR[1 + m // 14], m * 1024))
    for m in range(2): add(own[m], T(m))
    for m in range(2): b.append(dsw("ds_write_b128", vR[1], T(40 + m), m * 1024))
    for m in range(2, 40): add(own[m % 14], T(m))
    b += [waitlgkm0(), bar()]
    for m in range(2): b.append(dsr("ds_read_b128", T(40 + m), vR[2], m * 1024))
    out = [T(qt) for qt in range(7)]
    def fin(qt):
        a0, a1, o = own[qt], own[7 + qt], out[qt]
        return [vop("v_cvt_pk_bf16_f32", o[0:1], a0[0:1], a0[1:2]), vop("v_cvt_pk_bf16_f32", o[1:2], a0[2:3], a0[3:4]),
                vop("v_cvt_pk_bf16_f32", o[2:3], a1[0:1], a1[1:2]), vop("v_cvt_pk_bf16_f32", o[3:4], a1[2:3], a1[3:4])]
    def fin2(qt):
        o = out[qt]
        return [perm("v_permlane16_swap_b32", o[0:1], o[2:3]), perm("v_permlane16_swap_b32", o[1:2], o[3:4]),
                smov(sT[qt % 2], qt * 65536), vst("buffer_store_dwordx4", o, vC, SRD_C, sT[qt % 2], 0, CFG['out_flags'])]
    for qt in range(5): b += fin(qt)
    for qt in range(5): b += fin2(qt)
    for m in range(2): add(own[12 + m], T(40 + m))
    for qt in (5, 6): b += fin(qt)
    for qt in (5, 6): b += fin2(qt)
    stamp(b, 10)
    if CFG['stamps']:
        b.append(waitall())
        stamp(b, 11)
        b += [salu("s_add_u32", S(40), S(60), "0x4000000"), Ins("s_addc_u32 s41, s61, 0", 'salu', w=S(41), r=S(61)),
              smov(S(42), "0x200000"), smov(S(43), "0x20000"),
              salu("s_lshl_b32", sT[0], S(2), 2), salu("s_add_u32", sT[0], sT[0], sWAVE), salu("s_lshl_b32", sT[0], sT[0], 6)]
        if CFG['trace']:
            b += [vop("v_and_b32", V(2), 63, V(0)), vop("v_lshlrev_b32", V(2), 2, V(2)), salu("s_lshl_b32", sT[1], sT[0], 2), salu("s_add_u32", sT[1], sT[1], "0x100000"),
                  vop("v_accvgpr_read_b32", V(3), A(240)), vst("buffer_store_dword", V(3), V(2), S(40, 4), sT[1], 0)]
        for n in range(16): b += [vop("v_mov_b32", V(8 + n), S(80 + n))]
        b += [vop("v_mov_b32", V(2), 0), setexec(1)]
        for n in range(4): b.append(vst("buffer_store_dwordx4", V(8 + 4 * n, 4), V(2), S(40, 4), sT[0], 16 * n))
    b += [label("L_end"), raw("s_endpgm")]

def maxpass(p):
    b = p.block("max_pre")
    b.append(label("L_maxpass"))
    b += [smov(sPASS, 1), smov(sCNT, 32), smov(sKV, 0), bar()]
    for t in range(7): b.append(vop("v_mov_b32", vL[t], "0xff800000"))
    b = p.block("max_loop")
    b.append(label("L_maxl"))
    for pp in range(8):
        b += [salu("s_add_u32", M0, sMK, pp * 1024), dma(vKD[pp & 1], SRD_KV, sKV, 0, CFG['kv_flags']), salu("s_add_u32", sKV, sKV, sC1K)]
    b += [waitall(), bar()]
    for f in range(8): b.append(dsr("ds_read_b128", KF(f), vKA[f & 3], (f >> 2) * 4096))
    b += [waitlgkm0(), bar()]
    for t in range(7):
        s = SB(t & 1)
        for kt in range(2):
            for ds in range(4):
                d = s[4*kt:4*kt+4]
                b.append(mfma(d, KF(4 * kt + ds), QF(t, ds), 0 if ds == 0 else d))
        for n in range(0, 8, 2): b.append(vop("v_max3_f32", vL[t], vL[t], s[n:n+1], s[n+1:n+2]))
    b += [salu("s_sub_u32", sCNT, sCNT, 1), scmp("s_cmp_lg_u32", sCNT, 0), br("s_cbranch_scc1", "L_maxl")]
    b = p.block("max_post")
    lane_reduce(b, vL, [V(32 + t) for t in range(7)], "v_max_f32")
    for t in range(7):
        for r in NEGM(t): b.append(vop("v_sub_f32", [r], 0, vL[t]))
    b.append(smov(sKV, 0))
    for tile in range(4):
        for c, ins in kv_ops(tile): b.append(ins)
    for t in range(7): b.append(vop("v_mov_b32", vL[t], 0))
    if CFG['trace']: b.append(smov(sTRI, 32))
    b += [waitvm(('P', 7)), bar()]
    for f in range(8): b.append(dsr("ds_read_b128", KF(f), vKA[f & 3], (f >> 2) * 4096))
    b.append(smov(sCNT, 7))
    for G in range(-8, 0): b.append(at_mfma(G))
    b.append(br("s_branch", "L_at"))

def build(cfg=None):
    CFG.clear(); CFG.update(DEFAULT); CFG.update(cfg or {})
    p = Program()
    prologue(p); qproj(p); attention(p); check_store_handoff(p); oproj(p); maxpass(p)
    E = lambda *n: [(x, {}) for x in n]
    main = E("pro", "ep1", "pro2", "ep2", "pro3") + [("qp_loop", {'W': 4 * k, 'X': 2 * k}) for k in range(7)] + E("qp_tail", "tagspin", "tagspin", "qp_tail2", "pub", "qp_tail3")
    at = E("at_entry") + [("at_loop", {'P': CFG['ng'] * k, 'T': 32 * k}) for k in range(7)] + E("at_tail", "check")
    fb = E("max_pre", "max_loop", "max_loop", "max_post")
    st = E("store", "st_slow", "flag0") if CFG['local'] else E("store", "flag1")
    rest = E("handoff", "poll", "poll", "op_pro") + [("op_loop", {'W2': 4 * k, 'O2': 4 * k}) for k in range(7)] + E("op_tail")
    drop = lambda tr, *n: [x for x in tr if x[0] not in n]
    fast = lambda tr: [({'st_slow': 'st_fast', 'flag0': 'flag1'}.get(x[0], x[0]), x[1]) for x in tr]
    traces = []
    for body in (main + at + st + rest, main + at + fb + at + st + rest):
        for f in ((lambda t: t), fast) if CFG['local'] else ((lambda t: t),):
            for d in ((), ('ep1', 'ep2', 'pub', 'flag0', 'flag1'), ('tagspin',), ('tagspin', 'ep1', 'ep2'), ('tagspin', 'ep1', 'ep2', 'pub', 'flag0', 'flag1')):
                traces.append(drop(f(body), *d))
    for tr in traces: p.insert_waits(tr)
    n = 0
    for tr in traces: n += p.fix_hazards(tr, verbose=CFG.get('verbose'))
    return p, n
```

```python
from core import *
import atpat, struct

def f2u(x): return struct.unpack("<I", struct.pack("<f", x))[0]
RING = lambda r: r * 40960
DEFAULT = dict(kv_flags="nt", x_flags="", w_flags="", o_flags="sc1", o2_flags="sc1", w2_flags="", out_flags="", early_flags="", pf_wo_flags="",
               stamps=False, trace=False, local=False, thr=3, thr_tail=None, pat='PAT2', ne=2, pf0=6, pfs=0, kfill=5, ng=32, sleep=1, op_hi=52, opm=True,
               wo_gaps=(29 * 112 + 52, 30 * 112 + 14), tlb=0)
CFG = dict(DEFAULT)
M0 = 'm0'
FLAGS = 0x2000000
OOB = "0x40000000"
SRD_X, SRD_W, SRD_KV, SRD_F, SRD_O = S(4, 4), S(8, 4), S(12, 4), S(16, 4), S(20, 4)
SRD_O2, SRD_W2, SRD_C = S(4, 4), S(8, 4), S(20, 4)
sWAVE, sHH, sRHO = S(24), S(25), S(26)
sX, sW, sKV = S(27), S(28), S(29)
sO2, sW2 = S(27), S(28)
sMX, sMW, sMK, sMA = S(30), S(31), S(32), S(33)
sCNT, sPASS = S(34), S(35)
KP = lambda i: S(36 + 2 * i, 2)
sSCALE = S(62)
sC7F, sC1K = S(63), S(75)
sT = [S(64 + i) for i in range(5)]
sKH, sKO, sDH, sDO = S(69), S(70), S(71), S(76)
sNON, sXW = S(71), S(76)
sBLK, sB, sHP = S(72), S(73), S(74)
sWOP, sSLOT, sXCC, sFAST, sTRI, sPM = S(77), S(78), S(79), S(97), S(96), S(69)
vWA = [V(1 + i) for i in range(8)]
vXA = [V(9), V(10)]
vKD = [V(13), V(14)]
vTMP = [V(15), V(16)]
vXD = [V(17 + i) for i in range(7)]
vWD = [V(24 + i) for i in range(4)]
vB = [V(28), V(29), V(30), V(31)]
ACC = lambda dt, qt: V(32 + (qt * 8 + dt) * 4, 4)
QA = lambda dt: A(176 + 4 * dt, 4)
QB = lambda buf, qt: A((208 if buf == 0 else 0) + 4 * qt, 4)
QA31 = lambda dt: A(28 + 4 * dt, 4)
QB31 = lambda qt: A(236 + 4 * qt, 4) if qt < 5 else (A(60, 4) if qt == 5 else A(160, 4))
vKA = [V(1 + i) for i in range(4)]
vVA = [V(5 + i) for i in range(8)]
vL = [V(17 + i) for i in range(7)]
PB = lambda buf: V(24 + 4 * buf, 4)
SB = lambda buf: V(32 + 8 * buf, 8)
NEGM = lambda t: V(48 + 4 * t, 4)
def OT(t, dt): return V(96 + 32 * t + 4 * dt, 4) if t < 5 else A(32 * (t - 5) + 4 * dt, 4)
QF = lambda t, ds: A(64 + 16 * t + 4 * ds, 4)
KF = lambda f: A(176 + 4 * f, 4)
VF = lambda dt: A(208 + 4 * dt, 4)
vLN, vDUM, vXC, vXO = V(88), V(89), V(80), V(81)
vWA2 = [V(1 + i) for i in range(8)]
vWD2 = [V(9 + i) for i in range(8)]
vOD = [V(17), V(18)]
vR = [V(19 + i) for i in range(4)]
vC = V(23)
ACC2 = lambda n, qt: V(32 + (n * 7 + qt) * 4, 4)
FA = lambda n: A(4 * n, 4)
FA31 = lambda n: A(144 + 4 * n, 4)
FB = lambda buf, qt: A(32 + 28 * buf + 4 * qt, 4)

vop = valu
def smul(d, a, b): return salu("s_mul_i32", d, a, b, scc=False)
def csel(d, a, b): return Ins(f"s_cselect_b32 {op(d)}, {op(a)}, {op(b)}", 'salu', w=regs_of(d), r=regs_of(a, b) + [('scc', 0)])
def setexec(v): return raw(f"s_mov_b64 exec, {v}", 'salu', w=[('exec', 0)])
def srd(b, dst, ptr, off, size):
    b.append(salu("s_add_u32", [dst[0]], [ptr[0]], off))
    b.append(Ins(f"s_addc_u32 {rt([dst[1]])}, {rt([ptr[1]])}, 0", 'salu', w=[dst[1], ('scc', 0)], r=[ptr[1], ('scc', 0)]))
    b.append(smov([dst[2]], size)); b.append(smov([dst[3]], "0x20000"))
def stamp(b, n):
    if CFG['stamps']:
        b += [raw("s_memrealtime s[100:101]"), waitlgkm0(), smov(S(80 + n), S(100))]
        if n in CFG.get('cyc', ()): b += [raw("s_memtime s[98:99]"), waitlgkm0(), smov(S(92 + CFG['cyc'].index(n)), S(98))]
def thr(n): return Ins(f"s_waitcnt vmcnt({n})", 'thr', tag=n)
def touch(dst, voff, srd_, soff, fl=""):
    i = vld("buffer_load_dword", dst, voff, srd_, soff, 0, fl); i.w = []
    return i
def place(gaps, seq, free, lo, hi):
    ng = sum(c == 'G' for c, _ in seq)
    gpos = [free[(n * len(free)) // ng] for n in range(ng)] if ng else []
    assert len(set(gpos)) == ng, (ng, len(free))
    n = 0
    for c, ins in seq:
        if c == 'G': gaps[gpos[n]].append(ins); n += 1
        elif c == 'T': gaps[gpos[n]].append(ins)
        else:
            prev = gpos[n - 1] if n else lo
            nxt = gpos[n] if n < ng else hi
            if prev + 1 < nxt:
                gg = gaps[nxt - 1 if nxt < hi else prev + 1]
                k = 0
                while k < len(gg) and gg[k].kind in ('salu', 'waitvm', 'waitlgkm0', 'bar'): k += 1
                gg.insert(k, ins)
            else: gaps[prev].append(ins)

def prologue(p):
    b = p.block("pro")
    b += [scmp("s_cmp_ge_u32", S(2), 256), br("s_cbranch_scc1", "L_end")]
    stamp(b, 0)
    b += [raw("s_load_dwordx16 s[36:51], s[0:1], 0", w=S(36, 16)), raw("s_load_dwordx8 s[52:59], s[0:1], 64", w=S(52, 8)),
          raw("s_load_dwordx2 s[60:61], s[0:1], 96", w=S(60, 2))]
    lane, i16, g, r_, c_ = V(28), V(29), V(30), V(31), V(11)
    tmp, tmp2 = V(12), V(1)
    b += [vop("v_lshrrev_b32", tmp, 6, V(0)), vop("v_and_b32", lane, 63, V(0)), vop("v_readfirstlane_b32", sWAVE, tmp),
          vop("v_and_b32", i16, 15, lane), vop("v_lshrrev_b32", g, 4, lane)]
    b += [salu("s_lshr_b32", sHH, sWAVE, 1), salu("s_and_b32", sRHO, sWAVE, 1)]
    j_, t0, t1, t2, t3 = sT
    b += [salu("s_and_b32", t0, S(2), 7), salu("s_lshr_b32", j_, S(2), 3), salu("s_lshr_b32", sBLK, t0, 2)]
    if CFG['local']:
        b += [salu("s_and_b32", sB, t0, 3), salu("s_lshl_b32", sB, sB, 1), salu("s_and_b32", t1, j_, 1), salu("s_add_u32", sB, sB, t1), salu("s_lshr_b32", sHP, j_, 1)]
    else:
        b += [salu("s_and_b32", sB, t0, 1), salu("s_lshl_b32", sB, sB, 2), salu("s_and_b32", t1, j_, 3), salu("s_add_u32", sB, sB, t1),
              salu("s_bfe_u32", sHP, t0, "0x10001"), salu("s_lshl_b32", sHP, sHP, 3), salu("s_lshr_b32", t1, j_, 2), salu("s_add_u32", sHP, sHP, t1)]
    b += [salu("s_lshl_b32", sSLOT, sBLK, 3), salu("s_add_u32", sSLOT, sSLOT, sB), salu("s_lshl_b32", sSLOT, sSLOT, 4), salu("s_add_u32", sSLOT, sSLOT, sHP)]
    b += [salu("s_lshl_b32", sWOP, j_, 2), salu("s_and_b32", t1, S(2), 3), salu("s_add_u32", sWOP, sWOP, t1), salu("s_lshl_b32", sWOP, sWOP, 2),
          salu("s_add_u32", sWOP, sWOP, sWAVE), salu("s_lshl_b32", sWOP, sWOP, 14)]
    b += [smul(t0, sHH, 40960), salu("s_lshl_b32", t1, sRHO, 12), salu("s_add_u32", sMW, t0, t1), salu("s_add_u32", sMW, sMW, RING(2) + 8192),
          smul(t2, sRHO, 7168), salu("s_add_u32", sMX, t0, t2), salu("s_add_u32", sMX, sMX, 8192),
          smul(t2, sRHO, RING(2)), salu("s_add_u32", sMK, t0, t2), smul(sMA, sWAVE, 40960)]
    b += [salu("s_lshl_b32", t3, sRHO, 4), vop("v_add_u32", tmp, t3, g), vop("v_lshlrev_b32", tmp, 13, tmp),
          salu("s_lshl_b32", t3, sHH, 8), vop("v_add_u32", tmp, t3, tmp),
          vop("v_lshlrev_b32", tmp2, 1, g), vop("v_xor_b32", tmp2, tmp2, i16), vop("v_lshlrev_b32", V(2), 4, tmp2), vop("v_xor_b32", V(3), 128, V(2))]
    for pp in range(4):
        b += [vop("v_add_u32", vWD[pp], tmp, V(2) if pp < 2 else V(3)), vop("v_add_u32", vWD[pp], pp * 32768 - pp * 1024, vWD[pp])]
    b += [vop("v_lshrrev_b32", tmp, 3, lane), smul(t2, sHH, 112), smul(t3, sRHO, 56), salu("s_add_u32", t2, t2, t3),
          vop("v_add_u32", tmp, t2, tmp), vop("v_lshlrev_b32", tmp, 11, tmp),
          vop("v_and_b32", tmp2, 7, lane), vop("v_xor_b32", tmp2, tmp2, g), salu("s_lshl_b32", t3, sRHO, 2),
          vop("v_xor_b32", tmp2, t3, tmp2), vop("v_lshlrev_b32", V(2), 4, tmp2), vop("v_xor_b32", V(3), 64, V(2))]
    for pp in range(7):
        b += [vop("v_add_u32", vXD[pp], tmp, V(2) if pp % 2 == 0 else V(3)), vop("v_add_u32", vXD[pp], pp * 16384 - (pp & 3) * 1024, vXD[pp])]
    b += [smov(sX, 0), smov(sW, 0), vop("v_mov_b32", vTMP[0], 0), waitlgkm0()]
    b.append(scmp("s_cmp_eq_u32", sBLK, 0))
    for i in (3, 0, 1, 2, 4):
        for hl in range(2): b.append(csel(S(36 + 2 * i + hl), S(36 + 2 * i + hl), S(46 + 2 * i + hl)))
    b += [salu("s_lshl_b32", t0, sHP, 9), salu("s_sub_u32", t2, 8388608, t0)]; srd(b, SRD_W, KP(3), t0, t2)
    b += [smul(t0, sB, 458752)]; srd(b, SRD_X, KP(0), t0, 458752)
    def ldx(pair):
        for pp in range(7):
            if pp % 4 == 0: b.append(salu("s_add_u32", M0, sMX, (pair & 1) * 18432 + (pp >> 2) * 4096))
            b.append(dma(vXD[pp], SRD_X, sX, (pp & 3) * 1024, CFG['x_flags'], tag=('X', pair)))
        b.append(salu("s_add_u32", sX, sX, 128))
    def ldw(ks):
        b.append(salu("s_add_u32", M0, sMW, (ks & 3) * 8192))
        for pp in range(4): b.append(dma(vWD[pp], SRD_W, sW, pp * 1024, CFG['w_flags'], tag=('W', ks)))
        b.append(salu("s_add_u32", sW, sW, 262144))
    ldw(0); ldx(0)
    srd(b, SRD_F, KP(12), FLAGS, 4096 + 256 * 128)
    b += [salu("s_or_b32", t0, sSLOT, sWAVE), scmp("s_cmp_lg_u32", t0, 0), br("s_cbranch_scc1", "L_ep1")]
    b = p.block("ep1")
    b.append(vld("buffer_load_dword", vTMP[1], vTMP[0], SRD_F, 0, 0, "sc1"))
    b = p.block("pro2")
    b.append(label("L_ep1"))
    ldw(1); ldx(1); ldw(2); ldw(3)
    b += [vop("v_and_b32", tmp2, 2, g), vop("v_lshlrev_b32", tmp2, 1, tmp2), vop("v_and_b32", V(2), 1, g), vop("v_or_b32", tmp2, tmp2, V(2)),
          vop("v_lshlrev_b32", V(2), 1, g), scmp("s_cmp_eq_u32", sRHO, 0), Ins("s_cselect_b64 vcc, -1, 0", 'salu', w=[('vcc', 0)], r=[('scc', 0)]),
          vop("v_cndmask_b32", tmp2, V(2), tmp2, 'vcc'), vop("v_xor_b32", tmp2, tmp2, i16), vop("v_lshlrev_b32", tmp2, 4, tmp2),
          vop("v_lshl_add_u32", vKD[0], g, 8, tmp2), vop("v_xor_b32", vKD[1], 128, vKD[0])]
    for hl in range(2): b.append(csel(S(38 + hl), S(38 + hl), S(40 + hl)))
    b += [salu("s_lshl_b32", t0, sB, 5), salu("s_lshl_b32", t2, sHP, 1), salu("s_add_u32", t0, t0, t2), salu("s_add_u32", t0, t0, sHH), salu("s_lshl_b32", t0, t0, 18)]
    srd(b, SRD_KV, KP(1), t0, 262144)
    b += [salu("s_lshr_b32", t0, sSLOT, 4), salu("s_lshl_b32", t0, t0, 1), salu("s_add_u32", t0, t0, sRHO), salu("s_lshl_b32", t0, t0, 5),
          salu("s_lshl_b32", t2, sHP, 1), salu("s_add_u32", t0, t0, t2), salu("s_add_u32", t0, t0, sHH), smul(t0, t0, 28672)]
    srd(b, SRD_O, KP(12), t0, 28672)
    b += [Ins("s_getreg_b32 s79, hwreg(HW_REG_XCC_ID, 0, 4)", 'salu', w=sXCC), smov(sPASS, 0), smov(sSCALE, hex(f2u(1.4426950408889634 / 128 ** 0.5))),
          smov(sC7F, "0x7fff"), smov(sC1K, 1024)]
    if CFG['tlb']:
        T4, pg = S(64, 4), V(35)
        b += [vop("v_lshlrev_b32", pg, 20, lane), touch(A(255), pg, SRD_KV, 0), touch(A(255), pg, SRD_W, 0), touch(A(255), pg, SRD_F, sC1K, 'sc1')]
        srd(b, T4, KP(4), 0, 8388608); b.append(touch(A(255), pg, T4, 0))
        b += [salu("s_lshr_b32", t3, sSLOT, 4), smul(t3, t3, 1835008)]; srd(b, T4, KP(12), t3, 1835008); b.append(touch(A(255), pg, T4, 0, 'sc1'))
        b += [smov(t3, 1835004), touch(A(255), vTMP[0], T4, t3, 'sc1')]
        b += [smul(t3, sB, 917504)]; srd(b, T4, KP(10), t3, 917504); b.append(touch(A(255), pg, T4, 0))
        b += [smov(t3, 917500), touch(A(255), vTMP[0], T4, t3)]
        srd(b, T4, KP(11), 0, 256); b += [smov(t3, 128), touch(A(255), vTMP[0], T4, t3, 'sc1')]
    b += [vop("v_lshrrev_b32", tmp, 1, i16), vop("v_xor_b32", tmp, tmp, g), vop("v_lshlrev_b32", tmp, 4, tmp), vop("v_lshlrev_b32", tmp2, 7, i16),
          smul(t0, sRHO, 40960), salu("s_add_u32", t0, t0, 8192),
          vop("v_add_u32", tmp2, t0, tmp2), vop("v_add_u32", vXA[0], tmp2, tmp), vop("v_xor_b32", tmp, 64, tmp), vop("v_add_u32", vXA[1], tmp2, tmp)]
    a_, b_ = V(33), V(34)
    b += [vop("v_bfe_u32", r_, lane, 2, 2), vop("v_and_b32", c_, 3, lane), smul(t0, sHH, 40960), salu("s_add_u32", t1, t0, RING(2) + 8192),
          vop("v_lshl_add_u32", tmp, g, 3, r_), vop("v_lshlrev_b32", tmp, 8, tmp), vop("v_lshl_add_u32", tmp, c_, 3, tmp), vop("v_add_u32", tmp, t1, tmp),
          vop("v_and_b32", a_, 1, g), vop("v_lshl_add_u32", a_, a_, 2, r_), vop("v_lshlrev_b32", a_, 5, a_)]
    for dt in range(8): b += [vop("v_xor_b32", vWA[dt], dt * 32, a_), vop("v_add_u32", vWA[dt], tmp, vWA[dt])]
    b += [vop("v_lshl_add_u32", a_, g, 2, r_), vop("v_lshlrev_b32", a_, 8, a_), vop("v_lshl_add_u32", a_, c_, 3, a_), salu("s_add_u32", t1, t0, RING(2)),
          vop("v_add_u32", vB[3], t1, a_),
          vop("v_and_b32", a_, 1, g), vop("v_lshlrev_b32", a_, 1, a_), vop("v_lshrrev_b32", b_, 1, g), vop("v_or_b32", a_, a_, b_),
          vop("v_and_b32", b_, 1, i16), vop("v_xor_b32", a_, a_, b_), vop("v_and_b32", b_, 6, i16), vop("v_lshlrev_b32", b_, 1, b_), vop("v_xor_b32", a_, a_, b_),
          vop("v_lshlrev_b32", vB[0], 4, a_), vop("v_lshlrev_b32", b_, 8, i16), vop("v_add_u32", vB[1], t0, b_)]
    for r in range(32, 256, 2): b.append(vop("v_mov_b64", V(r, 2), 0))
    b += [smov(sCNT, 7), smov(sKH, 0), smov(sDH, 0), smov(sKO, CFG['pf0'] * 8192 if CFG['pfs'] else OOB), smov(sDO, CFG['pfs'] * 8192),
          salu("s_or_b32", t0, sSLOT, sWAVE), scmp("s_cmp_lg_u32", t0, 0), br("s_cbranch_scc1", "L_ep2")]
    b = p.block("ep2")
    srd(b, S(64, 4), KP(11), 0, 256)
    b += [vop("v_add_u32", vTMP[1], 1, vTMP[1]), vop("v_max_u32", vTMP[1], 1, vTMP[1]), setexec(1),
          vst("buffer_store_dword", vTMP[1], vTMP[0], SRD_F, 0, 0, "sc1"), vst("buffer_store_dword", vTMP[1], vTMP[0], S(64, 4), 0, 0, "sc1"), setexec(-1)]
    b = p.block("pro3")
    b.append(label("L_ep2"))
    b += [waitvm(('X', 0), ('W', 0)), bar()]
    for qt in range(7): b.append(dsr("ds_read_b128", QB(0, qt), vXA[0], qt * 2048))
    for dt in range(8):
        for h in range(2): b.append(dsr("ds_read_b64_tr_b16", QA(dt)[2*h:2*h+2], vWA[dt], h * 1024))
    stamp(b, 1)

def kv_ops(tile, thr_=None):
    o = []
    for pp in range(8):
        o += [('S', salu("s_and_b32", sPM, sKV, sC7F)), ('S', salu("s_add_u32", M0, sMK, sPM))]
        if thr_ is not None: o.append(('T', thr(thr_)))
        o += [('G', dma(vKD[pp & 1], SRD_KV, sKV, 0, CFG['kv_flags'], tag=('P', 8 * tile + pp))), ('S', salu("s_add_u32", sKV, sKV, sC1K))]
    return o

A_GAPS = [7 * dt + 6 for dt in range(8)]
D_GAPS = [8, 15, 22, 29, 36, 43, 50]
def qp_step(b, s, srel, kv=None, extra=(), early=None, both=False):
    gaps = [[] for _ in range(56)]
    used = []
    w = waitvm(('W', srel + 1))
    if (s + 1) % 2 == 0: w.need.append(('X', (srel + 1) // 2))
    if both:
        w.need.append(('W', srel + 2))
        for dt, g in enumerate((9, 16, 23, 30, 37, 44, 51, 53)):
            used.append(g)
            for h in range(2): gaps[g].append(dsr("ds_read_b64_tr_b16", QA31(dt)[2*h:2*h+2], vWA[dt], ((s + 2) & 3) * 8192 + h * 1024))
        for qt, g in enumerate((11, 18, 25, 32, 39, 46, 52)):
            used.append(g)
            gaps[g].append(dsr("ds_read_b128", QB31(qt), vXA[1], 18432 + qt * 2048))
    gaps[5] += [w, waitlgkm0()]
    gaps[6].append(bar())
    for dt in range(8):
        for h in range(2): gaps[A_GAPS[dt]].append(dsr("ds_read_b64_tr_b16", QA(dt)[2*h:2*h+2], vWA[dt], ((s + 1) & 3) * 8192 + h * 1024))
    pair, par = (s + 1) >> 1, (s + 1) & 1
    for qt, g in enumerate(D_GAPS):
        gaps[g].append(dsr("ds_read_b128", QB((s + 1) & 1, qt), vXA[par], (pair & 1) * 18432 + qt * 2048))
    seq = []
    if early is not None:
        for n in range(early):
            seq += [('S', salu("s_add_u32", M0, sMK, sKH)), ('G', dma(vKD[n & 1], SRD_KV, sKO, 0, CFG['early_flags'], tag=('P', 7))),
                    ('S', salu("s_add_u32", sKH, sKH, sDH)), ('S', salu("s_add_u32", sKO, sKO, sDO))]
    if s % 2 == 1 and (s + 3) // 2 <= 15:
        pair = (s + 3) // 2
        for pp in range(7):
            if pp % 4 == 0: seq.append(('S', salu("s_add_u32", M0, sMX, (pair & 1) * 18432 + (pp >> 2) * 4096)))
            seq.append(('G', dma(vXD[pp], SRD_X, sX, (pp & 3) * 1024, CFG['x_flags'], tag=('X', (srel + 3) // 2))))
        seq.append(('S', salu("s_add_u32", sX, sX, 128)))
    if s + 4 <= 31:
        seq.append(('S', salu("s_add_u32", M0, sMW, (s & 3) * 8192)))
        for pp in range(4): seq.append(('G', dma(vWD[pp], SRD_W, sW, pp * 1024, CFG['w_flags'], tag=('W', srel + 4))))
        seq.append(('S', salu("s_add_u32", sW, sW, 262144)))
    if kv is not None: seq += kv_ops(kv, CFG['thr_tail'])
    free = [g for g in range(9, 55) if g not in A_GAPS and g not in D_GAPS and g not in used]
    place(gaps, seq, free, 7, 56)
    for g, ins in extra: gaps[g].append(ins)
    for j in range(56):
        dt, qt = divmod(j, 7)
        b.append(mfma(ACC(dt, qt), QA(dt), QB(s & 1, qt), ACC(dt, qt)))
        b += gaps[j]

def conv_ops(qt):
    st = []
    for ds in range(4):
        t0, t1 = ACC(2 * ds, qt), ACC(2 * ds + 1, qt)
        q = QF(qt, ds)
        st.append(([vop("v_mul_f32", [r], sSCALE, [r]) for r in t0 + t1],
                   [vop("v_cvt_pk_bf16_f32", t[n:n+1], t[2*n:2*n+1], t[2*n+1:2*n+2]) for t in (t0, t1) for n in range(2)],
                   [perm("v_permlane16_swap_b32", t0[0:1], t1[0:1]), perm("v_permlane16_swap_b32", t0[1:2], t1[1:2])],
                   [vop("v_accvgpr_write_b32", q[n:n+1], src) for n, src in enumerate((t0[0:1], t0[1:2], t1[0:1], t1[1:2]))]))
    o = []
    for u, k in ((0,0),(1,0),(0,1),(2,0),(1,1),(0,2),(3,0),(2,1),(1,2),(0,3),(3,1),(2,2),(1,3),(3,2),(2,3),(3,3)):
        o += [(16 * qt + 4 * u + 5, i) for i in st[u][k]]
    return o

def qproj(p):
    b = p.block("qp_loop")
    b.append(label("L_qp"))
    for s in range(4): qp_step(b, s, s, early=CFG['ne'] if s % 2 == 0 else None)
    nreal = 8 // (2 * CFG['ne'])
    b += [scmp("s_cmp_eq_u32", sCNT, nreal + 1), csel(sKO, 0, sKO), csel(sDO, 1024, sDO), csel(sDH, 1024, sDH),
          salu("s_sub_u32", sCNT, sCNT, 1), scmp("s_cmp_lg_u32", sCNT, 0), br("s_cbranch_scc1", "L_qp")]
    b = p.block("qp_tail")
    srd(b, S(64, 4), KP(11), 0, 256)
    b += [smov(sKV, 8192), vld("buffer_load_dword", vTMP[1], vTMP[0], S(64, 4), 0, 0, "sc1")]
    qp_step(b, 28, 28)
    b += [vop("v_readfirstlane_b32", sNON, vTMP[1]), smov(sCNT, "0x200000"), scmp("s_cmp_lg_u32", sNON, 0), br("s_cbranch_scc1", "L_tag")]
    b = p.block("tagspin")
    b += [label("L_tagspin"), raw("s_sleep 4"), vld("buffer_load_dword", vTMP[1], vTMP[0], S(64, 4), 0, 0, "sc1"), waitall(), vop("v_readfirstlane_b32", sNON, vTMP[1]),
          salu("s_sub_u32", sCNT, sCNT, 1), scmp("s_cmp_eq_u32", sCNT, 0), br("s_cbranch_scc1", "L_tag"),
          scmp("s_cmp_eq_u32", sNON, 0), br("s_cbranch_scc1", "L_tagspin")]
    b = p.block("qp_tail2")
    b.append(label("L_tag"))
    b += [salu("s_add_u32", sXW, sXCC, 1), salu("s_lshl_b32", sXW, sXW, 24), salu("s_add_u32", sXW, sXW, sNON),
          salu("s_lshl_b32", sSLOT, sSLOT, 7), salu("s_add_u32", sSLOT, sSLOT, 4096), vop("v_mov_b32", vTMP[1], sXW),
          scmp("s_cmp_lg_u32", sWAVE, 0), br("s_cbranch_scc1", "L_nopub")]
    b = p.block("pub")
    b += [setexec(1), vst("buffer_store_dword", vTMP[1], vTMP[0], SRD_F, sSLOT, 4, "sc1"), setexec(-1)]
    b = p.block("qp_tail3")
    b.append(label("L_nopub"))
    qp_step(b, 29, 29, kv=1, both=True)
    gaps = [[] for _ in range(112)]
    gaps[5] += [waitvm(('P', 7)), waitlgkm0()]; gaps[6].append(bar())
    place(gaps, kv_ops(2, CFG['thr_tail']) + kv_ops(3, CFG['thr_tail']), list(range(9, 92)), 7, 112)
    for f in range(8): gaps[96 + 2 * f + 1].append(dsr("ds_read_b128", KF(f), vKA[f & 3], (f >> 2) * 4096))
    q = []
    for ds in range(4): q += [(0, vop("v_xor_b32", vKA[ds], ds * 64, vB[0])), (0, vop("v_add_u32", vKA[ds], vB[1], vKA[ds]))]
    q += [(0, vop("v_lshrrev_b32", vB[0], 4, V(0))), (0, vop("v_and_b32", vB[0], 1, vB[0])), (0, vop("v_bfe_u32", vB[1], V(0), 2, 2)),
          (0, vop("v_lshl_add_u32", vB[0], vB[0], 2, vB[1])), (0, vop("v_lshlrev_b32", vB[0], 5, vB[0]))]
    for dt in range(8): q += [(0, vop("v_xor_b32", vVA[dt], dt * 32, vB[0])), (0, vop("v_add_u32", vVA[dt], vB[3], vVA[dt]))]
    for t in range(7): q.append((0, vop("v_mov_b32", vL[t], 0)))
    for qt in range(7):
        q += conv_ops(qt)
        if qt == 1:
            for t in range(7):
                for n in (0, 2): q.append((0, vop("v_mov_b64", NEGM(t)[n:n+2], 0)))
            q += [(0, vop("v_and_b32", vLN, 63, V(0))), (0, vop("v_and_b32", vXO, 15, V(0))), (0, vop("v_lshlrev_b32", vLN, 7, vLN)), (0, vop("v_lshlrev_b32", vXO, 7, vXO))]
    sc = []
    srd(sc, SRD_X, KP(4), 0, 8388608)
    for n, ins in enumerate(sc): gaps[1 + n // 2].append(ins)
    g = 1
    while q and g < 112:
        room = CFG['kfill'] - 2 * sum(i.kind in VM for i in gaps[g]) - sum(i.kind in LG for i in gaps[g])
        while q and room > 0 and q[0][0] <= g:
            gaps[g].append(q.pop(0)[1]); room -= 1
        g += 1
    for j in range(112):
        qt, r = divmod(j, 16); dt, k = divmod(r, 2)
        b.append(mfma(ACC(dt, qt), QA31(dt) if k else QA(dt), QB31(qt) if k else QB(0, qt), ACC(dt, qt)))
        b += gaps[j]
    if CFG['trace']: b += [smov(sTRI, 32), vop("v_mov_b32", V(95), 0), vop("v_and_b32", V(94), 63, V(0))]
    stamp(b, 2)
    if CFG['ng'] != 32 or True: b.append(smov(sCNT, 7))
    stamp(b, 3)
    rest = [i for _, i in q]
    per = (len(rest) + 7) // 8
    for G in range(-8, 0):
        b.append(at_mfma(G))
        b += rest[:per]; rest = rest[per:]

def at_ins(key, i):
    k = key[0]
    if not 0 <= i <= 31: return None
    if k in 'ECA':
        t = int(key[1]); j = int(key[2]); n = 7 * i + t
        s = SB(n & 1)
        if k == 'E': return [trans("v_exp_f32", s[j:j+1], s[j:j+1])]
        if k == 'A': return [vop("v_add_f32", vL[t], vL[t], s[j:j+1])]
        return [vop("v_cvt_pk_bf16_f32", PB(n & 1)[j:j+1], s[2*j:2*j+1], s[2*j+1:2*j+2])]
    if k == 'V':
        dt, h = int(key[1]), int(key[2])
        o = [dsr("ds_read_b64_tr_b16", VF(dt)[2*h:2*h+2], vVA[dt], (i & 3) * 8192 + h * 4096)]
        if CFG['trace'] and key == 'V00' and i > 0:
            o += [vop("v_cmp_eq_u32", 'vcc', sTRI, V(94)), vop("v_mov_b32", V(93), S(100)), salu("s_add_u32", sTRI, sTRI, 1), vop("v_cndmask_b32", V(95), V(95), V(93), 'vcc')]
        return o
    if i + 1 > 31: return None
    if k == 'K':
        f = int(key[1])
        return [dsr("ds_read_b128", KF(f), vKA[f & 3], ((i + 1) & 3) * 8192 + (f >> 2) * 4096)]
    if k == 'W': return [waitvm(('P', 8 * i + 15, 'T'))]
    if k == 'B': return [bar()] + ([raw("s_memrealtime s[100:101]")] if CFG['trace'] else [])
    raise KeyError(key)

def at_mfma(G):
    n, j = divmod(G, 16)
    if j < 8:
        m = n - 1
        if not 0 <= m < 224: return None
        i, t = divmod(m, 7)
        return mfma(OT(t, j), VF(j), PB(m & 1), 0 if i == 0 else OT(t, j))
    m = n + 1
    if not 0 <= m < 224: return None
    i, t = divmod(m, 7)
    kt, ds = divmod(j - 8, 4)
    d = SB(m & 1)[4*kt:4*kt+4]
    return mfma(d, KF(j - 8), QF(t, ds), NEGM(t) if ds == 0 else d)

def at_range(b, g0, g1, pat, gsel, piece):
    pre = {}
    for G in gsel:
        pre.setdefault(G - 2, []).append(salu("s_and_b32", sPM, sKV, sC7F)); pre.setdefault(G - 1, []).append(salu("s_add_u32", M0, sMK, sPM))
        pre.setdefault(G + (2 if G % 112 == 79 else 1), []).insert(0, salu("s_add_u32", sKV, sKV, sC1K))
    for G in range(g0, g1):
        m = at_mfma(G)
        if m is not None: b.append(m)
        b += pre.pop(G, [])
        i, rel = divmod(G, atpat.STEP)
        if G in CFG['wo_gaps']: b += [touch(vDUM, vLN, SRD_X, sWOP, CFG['pf_wo_flags']), salu("s_add_u32", sWOP, sWOP, 8192)]
        if G == 30 * 112 + 52 and CFG['local']:
            b += [salu("s_sub_u32", sT[0], sSLOT, 4096), salu("s_and_b32", sT[0], sT[0], "0xfffff800"), salu("s_add_u32", sT[0], sT[0], 4096),
                  vld("buffer_load_dword", vXC, vXO, SRD_F, sT[0], 4, "sc1")]
        if G in gsel:
            if CFG['thr'] is not None: b.append(thr(CFG['thr']))
            b.append(dma(vKD[(piece - CFG['_par0']) & 1], SRD_KV, sKV, 0, CFG['kv_flags'], tag=('P', piece))); piece += 1
        for key, d in pat[rel]:
            if key[0] in 'GMUY': continue
            ins = at_ins(key, i + d)
            if ins is not None: b += ins
    assert not pre, pre.keys()
    return piece

def attention(p):
    pat, pos, over = atpat.parse(getattr(atpat, CFG['pat']))
    gp = sorted(v % 112 for k, v in pos.items() if k[0] == 'G')
    NG = CFG['ng']
    CFG['_par0'] = 0
    ent = [g for g in gp if g > 80]
    body = [112 * i + g for i in range(1, 6) for g in gp if 120 <= 112 * i + g < 568]
    assert len(body) == 32
    drop = {32: [], 31: [112 * 2 + 27], 30: [112 * 2 + 27, 112 * 4 + 27]}[NG]
    body = [g for g in body if g not in drop]
    n_tail = 256 - 32 - len(ent) - 7 * NG
    tail = [112 * i + g for i in range(29, 31) for g in gp if 112 * i + g >= 3256][:max(0, n_tail)]
    allg = ent + [g + 448 * k for k in range(7) for g in body] + tail
    lead = 10 ** 9
    for n, G in enumerate(allg):
        tile = (32 + n) // 8
        assert G > 112 * (tile - 4) + 80, (n, G)
        if tile <= 31: lead = min(lead, 112 * (tile - 1) + 79 - G)
    CFG['_lead'] = lead
    b = p.block("at_entry")
    b.append(label("L_at"))
    pc = at_range(b, 0, 120, pat, set(ent), 32)
    b = p.block("at_loop")
    b.append(label("L_atl"))
    at_range(b, 120, 568, pat, set(body), pc)
    if NG % 2: b.append(Ins("v_swap_b32 v13, v14", 'valu', w=V(13, 2), r=V(13, 2)))
    b += [salu("s_sub_u32", sCNT, sCNT, 1), scmp("s_cmp_lg_u32", sCNT, 0), br("s_cbranch_scc1", "L_atl")]
    b = p.block("at_tail")
    CFG['_par0'] = (7 * NG) & 1
    at_range(b, 3256, 32 * 112 + 8, pat, set(tail), pc + 7 * NG)
    if (7 * NG) & 1: b.append(Ins("v_swap_b32 v13, v14", 'valu', w=V(13, 2), r=V(13, 2)))
    stamp(b, 4)
    if CFG['trace']: b += [vop("v_accvgpr_write_b32", A(240), V(95))]

def lane_reduce(b, regs, tmps, opname):
    for sw in ("v_permlane16_swap_b32", "v_permlane32_swap_b32"):
        for r, t in zip(regs, tmps): b.append(vop("v_mov_b32", t, r))
        for r, t in zip(regs, tmps): b.append(perm(sw, r, t))
        for r, t in zip(regs, tmps): b.append(vop(opname, r, r, t))

def ld_o2(ks, tag):
    o = [('G', vld("buffer_load_dwordx4", FB(ks & 3, qt), vOD[qt >> 2], SRD_O2, sO2, (qt & 3) * 1024, CFG['o2_flags'], tag=('O2', tag))) for qt in range(7)]
    return o + [('S', salu("s_add_u32", sO2, sO2, 7168))]
def ld_w2(ks, tag):
    o = []
    for pc in range(8):
        if pc % 4 == 0: o.append(('S', salu("s_add_u32", M0, sMA, (ks & 3) * 8192 + (pc >> 2) * 4096)))
        o.append(('G', dma(vWD2[pc], SRD_W2, sW2, (pc & 3) * 1024, CFG['w2_flags'], tag=('W2', tag))))
    return o + [('S', salu("s_add_u32", sW2, sW2, 65536))]

def check_store_handoff(p):
    b = p.block("check")
    tm = [V(32 + 2 * t) for t in range(7)]
    if CFG['local']:
        b += [vop("v_cmp_ne_u32", 'vcc', sXW, vXC), nop(1), salu("s_or_b32", sFAST, 'vcc_lo', 'vcc_hi')]
    lane_reduce(b, vL, tm, "v_add_f32")
    lo, hi, bad = sT[0], sT[1], S(66, 2)
    b += [smov(lo, hex(f2u(2.0 ** -32))), smov(hi, hex(f2u(2.0 ** 32))), raw("s_mov_b64 s[66:67], 0", 'salu', w=bad)]
    for t in range(7):
        b += [vop("v_cmp_nle_f32", 'vcc', lo, vL[t]), vop("v_cmp_nge_f32", S(98, 2), hi, vL[t]), trans("v_rcp_f32", tm[t], vL[t]),
              raw("s_or_b64 s[66:67], s[66:67], vcc", 'salu', w=bad + [('scc', 0)], r=bad + [('vcc', 0)]),
              raw("s_or_b64 s[66:67], s[66:67], s[98:99]", 'salu', w=bad + [('scc', 0)], r=bad + S(98, 2))]
    b += [salu("s_or_b32", sT[0], S(66), S(67)), salu("s_lshl_b32", sT[1], sWAVE, 2), salu("s_add_u32", sT[1], sT[1], RING(0) + 32768),
          vop("v_mov_b32", V(48), sT[1]), vop("v_mov_b32", V(49), sT[0]), vop("v_mov_b32", V(50), RING(0) + 32768),
          dsw("ds_write_b32", V(48), V(49), 0), waitlgkm0(), bar(), dsr("ds_read_b128", V(52, 4), V(50), 0),
          vop("v_and_b32", V(24), 63, V(0)), vop("v_lshlrev_b32", vOD[0], 4, V(24)), vop("v_add_u32", vOD[1], 4096, vOD[0]),
          vop("v_or_b32", V(52), V(52), V(53)), vop("v_or3_b32", V(52), V(52), V(54), V(55)), vop("v_readfirstlane_b32", sT[0], V(52)),
          scmp("s_cmp_eq_u32", sT[0], 0), br("s_cbranch_scc1", "L_store"),
          scmp("s_cmp_eq_u32", sPASS, 0), br("s_cbranch_scc1", "L_maxpass")]
    b = p.block("store")
    b.append(label("L_store"))
    stamp(b, 5)
    lane, i16, g, r_, c_, tmp, tmp2 = V(24), V(25), V(26), V(27), V(28), V(29), V(30)
    def stores(b, flags):
        for t in (5, 0, 6, 1, 2, 3, 4):
            rc = V(32 + 2 * t, 2)
            if t < 5: R = V(96 + 32 * t, 32)
            else:
                R = V(48, 32)
                for n in range(32): b.append(vop("v_accvgpr_read_b32", R[n:n+1], A(32 * (t - 5) + n)))
            for n in range(0, 32, 2): b.append(vop("v_pk_mul_f32", R[n:n+2], R[n:n+2], rc, extra="op_sel_hi:[1,0]"))
            for m in range(4):
                r = R[8*m:8*m+8]
                for n in range(4): b.append(vop("v_cvt_pk_bf16_f32", r[n:n+1], r[2*n:2*n+1], r[2*n+1:2*n+2]))
                off = m * 7168 + t * 1024
                b.append(smov(sT[m % 2], off & ~4095))
                b.append(vst("buffer_store_dwordx4", r[0:4], vOD[0], SRD_O, sT[m % 2], off & 4095, flags, tag=('OST', 0)))
    def publish(b, flags, n):
        stamp(b, 6)
        b += [vop("v_mov_b32", tmp, 0), vop("v_mov_b32", tmp2, sNON), waitvm(('OST', 0)), bar(), scmp("s_cmp_lg_u32", sWAVE, 0), br("s_cbranch_scc1", f"L_noflag")]
        b = p.block(f"flag{n}")
        b += [setexec(1), vst("buffer_store_dword", tmp2, tmp, SRD_F, sSLOT, 0, flags), setexec(-1)]
        return b
    if CFG['local']:
        b += [scmp("s_cmp_eq_u32", sFAST, 0), br("s_cbranch_scc1", "L_stfast")]
        b = p.block("st_slow"); stores(b, CFG['o_flags']); b = publish(b, "sc1", 0); b.append(br("s_branch", "L_noflag"))
        b = p.block("st_fast"); b.append(label("L_stfast")); stores(b, ""); publish(b, CFG.get('flag_fast', ""), 1)
    else:
        stores(b, CFG['o_flags']); publish(b, "sc1", 1)
    b = p.block("handoff")
    b.append(label("L_noflag"))
    stamp(b, 7)
    t0, t1, t2, rho2, ct = sT
    b += [salu("s_and_b32", rho2, sHP, 1), salu("s_lshr_b32", ct, sHP, 1), vop("v_and_b32", i16, 15, lane), vop("v_lshrrev_b32", g, 4, lane)]
    b += [vop("v_lshlrev_b32", tmp, 11, g), vop("v_lshlrev_b32", tmp2, 1, g), vop("v_xor_b32", tmp2, tmp2, i16), vop("v_lshlrev_b32", tmp2, 4, tmp2),
          vop("v_xor_b32", V(31), 128, tmp2)]
    for pc in range(8):
        b += [vop("v_add_u32", vWD2[pc], tmp, tmp2 if pc % 2 == 0 else V(31)), vop("v_add_u32", vWD2[pc], pc * 8192 - (pc & 3) * 1024, vWD2[pc])]
    b += [salu("s_lshl_b32", t0, sWAVE, 21), salu("s_lshl_b32", t1, ct, 8), salu("s_add_u32", t0, t0, t1), salu("s_sub_u32", t2, 2097152, t1)]
    srd(b, SRD_W2, KP(4), t0, t2)
    b.append(smov(sW2, 0))
    for ks in range(CFG.get('w2pre', 2)):
        for c, ins in ld_w2(ks, ks): b.append(ins)
    b += [salu("s_lshl_b32", t0, sBLK, 3), salu("s_add_u32", t0, t0, sB),
          salu("s_lshl_b32", t2, t0, 1), salu("s_add_u32", t2, t2, rho2), salu("s_lshl_b32", t2, t2, 2), salu("s_add_u32", t2, t2, sWAVE), smul(t2, t2, 229376)]
    srd(b, SRD_O2, KP(12), t2, 229376)
    b += [smov(sO2, 0), salu("s_lshl_b32", t0, t0, 11), salu("s_lshl_b32", t1, sWAVE, 9), salu("s_add_u32", t0, t0, t1), salu("s_add_u32", sSLOT, t0, 4096)]
    b += [smul(t0, sB, 224), smul(t1, rho2, 112), salu("s_add_u32", t0, t0, t1), salu("s_lshl_b32", t0, t0, 12),
          salu("s_lshl_b32", t1, sBLK, 11), salu("s_add_u32", t0, t0, t1), salu("s_lshl_b32", t1, ct, 8), salu("s_add_u32", t0, t0, t1)]
    srd(b, SRD_C, KP(10), t0, 111 * 4096 + 256)
    b += [vop("v_and_b32", tmp, 1, g), vop("v_lshlrev_b32", tmp, 1, tmp), vop("v_lshrrev_b32", tmp2, 1, g), vop("v_or_b32", tmp, tmp, tmp2),
          vop("v_lshlrev_b32", tmp, 4, tmp), vop("v_lshl_add_u32", tmp, i16, 12, tmp), salu("s_lshl_b32", t0, sWAVE, 6), vop("v_add_u32", vC, t0, tmp)]
    b += [vop("v_bfe_u32", r_, lane, 2, 2), vop("v_and_b32", c_, 3, lane),
          vop("v_lshl_add_u32", tmp, g, 2, r_), vop("v_lshlrev_b32", tmp, 8, tmp), vop("v_lshl_add_u32", tmp, c_, 3, tmp), vop("v_add_u32", tmp, sMA, tmp),
          vop("v_and_b32", g, 1, g), vop("v_lshl_add_u32", g, g, 2, r_), salu("s_lshl_b32", t0, sWAVE, 1), vop("v_xor_b32", g, t0, g), vop("v_lshlrev_b32", g, 5, g)]
    for n in range(8): b += [vop("v_xor_b32", vWA2[n], n * 32, g), vop("v_add_u32", vWA2[n], tmp, vWA2[n])]
    for n in range(4): b += [salu("s_xor_b32", t0, sWAVE, n), smul(t0, t0, 40960), vop("v_add_u32", vR[n], t0, vOD[0])]
    b += [vop("v_lshlrev_b32", tmp, 7, c_), smov(sCNT, "0x200000")]
    for r in range(32, 256, 2): b.append(vop("v_mov_b64", V(r, 2), 0))
    b.append(waitvm(('W2', 0)))
    for n in range(8):
        for h in range(2): b.append(dsr("ds_read_b64_tr_b16", FA(n)[2*h:2*h+2], vWA2[n], h * 4096))
    b = p.block("poll")
    b += [label("L_poll"), vld("buffer_load_dword", tmp2, tmp, SRD_F, sSLOT, 0, "sc1"), waitall(), vop("v_cmp_ne_u32", 'vcc', sNON, tmp2),
          salu("s_sub_u32", sCNT, sCNT, 1), scmp("s_cmp_eq_u32", sCNT, 0), br("s_cbranch_scc1", "L_go"),
          Ins("s_cbranch_vccz L_go", 'br', r=[('vcc', 0)]), raw(f"s_sleep {CFG['sleep']}"), br("s_branch", "L_poll")]
    b = p.block("op_pro")
    b.append(label("L_go"))
    stamp(b, 8)
    seq = ld_o2(0, 0)
    for ks in range(1, 4):
        if ks >= CFG.get('w2pre', 2): seq += ld_w2(ks, ks)
        if ks < 3: seq += ld_o2(ks, ks)
    for c, ins in seq: b.append(ins)
    b.append(smov(sCNT, 7))

def op_step(b, s, srel, both=False):
    gaps = [[] for _ in range(56)]
    used = []
    w = waitvm(('W2', srel + 1))
    if both:
        w.need.append(('W2', srel + 2))
        for n in range(8):
            used.append(7 * n + 9 if n < 7 else 53)
            for h in range(2): gaps[used[-1]].append(dsr("ds_read_b64_tr_b16", FA31(n)[2*h:2*h+2], vWA2[n], ((s + 2) & 3) * 8192 + h * 4096))
    gaps[5].append(w)
    for n in range(8):
        for h in range(2): gaps[7 * n + 6].append(dsr("ds_read_b64_tr_b16", FA(n)[2*h:2*h+2], vWA2[n], ((s + 1) & 3) * 8192 + h * 4096))
    seq = []
    if s + 3 <= 31: seq += ld_o2(s + 3, srel + 3)
    if s + 4 <= 31:
        seq += ld_w2(s + 4, srel + 4)
        gaps[4].append(waitlgkm0())
    free = [g for g in range(7, CFG['op_hi']) if g % 7 != 6 and g not in used]
    place(gaps, seq, free, 5, 56)
    for j in range(56):
        n, qt = divmod(j, 7)
        b.append(mfma(ACC2(n, qt), FA(n), FB(s & 3, qt), ACC2(n, qt)))
        b += gaps[j]

def oproj(p):
    b = p.block("op_loop")
    b.append(label("L_op"))
    for s in range(4): op_step(b, s, s)
    b += [salu("s_sub_u32", sCNT, sCNT, 1), scmp("s_cmp_lg_u32", sCNT, 0), br("s_cbranch_scc1", "L_op")]
    b = p.block("op_tail")
    op_step(b, 28, 28); op_step(b, 29, 29, both=True)
    T = lambda m: ACC2(2 + m // 7, m % 7)
    gaps = [[] for _ in range(112)]
    gaps[4].append(waitlgkm0())
    sent, g = 0, 8
    while g < 112 and sent < 40:
        if 14 * (sent // 7) + 2 * (sent % 7) + 1 + 6 <= g:
            gaps[g].append(dsw("ds_write_b128", vR[0], T(sent), sent * 1024)); sent += 1; g += CFG.get('wsp', 3)
        else: g += 1
    for j in range(112):
        pos, r = divmod(j, 14); qt, k = divmod(r, 2); n = (2, 3, 4, 5, 6, 7, 0, 1)[pos]
        b.append(mfma(ACC2(n, qt), FA31(n) if k else FA(n), FB((30 + k) & 3, qt), ACC2(n, qt)))
        b += gaps[j]
    stamp(b, 9)
    own = [ACC2(m // 7, m % 7) for m in range(14)]
    for m in range(sent, 40): b.append(dsw("ds_write_b128", vR[0], T(m), m * 1024))
    b += [waitlgkm0(), bar()]
    def add(dst, src):
        for r in range(4): b.append(vop("v_add_f32", dst[r:r+1], dst[r:r+1], src[r:r+1]))
    for m in range(40): b.append(dsr("ds_read_b128", T(m), vR[1 + m // 14], m * 1024))
    for m in range(2): add(own[m], T(m))
    for m in range(2): b.append(dsw("ds_write_b128", vR[1], T(40 + m), m * 1024))
    for m in range(2, 40): add(own[m % 14], T(m))
    b += [waitlgkm0(), bar()]
    for m in range(2): b.append(dsr("ds_read_b128", T(40 + m), vR[2], m * 1024))
    out = [T(qt) for qt in range(7)]
    def fin(qt):
        a0, a1, o = own[qt], own[7 + qt], out[qt]
        return [vop("v_cvt_pk_bf16_f32", o[0:1], a0[0:1], a0[1:2]), vop("v_cvt_pk_bf16_f32", o[1:2], a0[2:3], a0[3:4]),
                vop("v_cvt_pk_bf16_f32", o[2:3], a1[0:1], a1[1:2]), vop("v_cvt_pk_bf16_f32", o[3:4], a1[2:3], a1[3:4])]
    def fin2(qt):
        o = out[qt]
        return [perm("v_permlane16_swap_b32", o[0:1], o[2:3]), perm("v_permlane16_swap_b32", o[1:2], o[3:4]),
                smov(sT[qt % 2], qt * 65536), vst("buffer_store_dwordx4", o, vC, SRD_C, sT[qt % 2], 0, CFG['out_flags'])]
    for qt in range(5): b += fin(qt)
    for qt in range(5): b += fin2(qt)
    for m in range(2): add(own[12 + m], T(40 + m))
    for qt in (5, 6): b += fin(qt)
    for qt in (5, 6): b += fin2(qt)
    stamp(b, 10)
    if CFG['stamps']:
        b.append(waitall())
        stamp(b, 11)
        b += [salu("s_add_u32", S(40), S(60), "0x4000000"), Ins("s_addc_u32 s41, s61, 0", 'salu', w=S(41), r=S(61)),
              smov(S(42), "0x200000"), smov(S(43), "0x20000"),
              salu("s_lshl_b32", sT[0], S(2), 2), salu("s_add_u32", sT[0], sT[0], sWAVE), salu("s_lshl_b32", sT[0], sT[0], 6)]
        if CFG['trace']:
            b += [vop("v_and_b32", V(2), 63, V(0)), vop("v_lshlrev_b32", V(2), 2, V(2)), salu("s_lshl_b32", sT[1], sT[0], 2), salu("s_add_u32", sT[1], sT[1], "0x100000"),
                  vop("v_accvgpr_read_b32", V(3), A(240)), vst("buffer_store_dword", V(3), V(2), S(40, 4), sT[1], 0)]
        if CFG.get('dbg') is not None:
            b += [salu("s_lshl_b32", sT[1], S(2), 2), salu("s_add_u32", sT[1], sT[1], sWAVE), scmp("s_cmp_lg_u32", sT[1], CFG['dbg'] * 4), br("s_cbranch_scc1", "L_end")]
            srd(b, S(44, 4), KP(11), 0, 256)
            for n in range(1, 12): b += [salu("s_sub_u32", sT[2], S(80 + n), S(80)), vop("v_mov_b32", V(7 + n), sT[2])]
            for n in range(3): b += [salu("s_sub_u32", sT[2], S(93 + n), S(92 + n)), vop("v_mov_b32", V(19 + n), sT[2])]
            b += [vop("v_mov_b32", V(22), 0), vop("v_mov_b32", V(2), 0), setexec(1)]
            for n in range(4): b.append(vst("buffer_store_dword" + ("x4" if n < 3 else "x3"), V(8 + 4 * n, 4 if n < 3 else 3), V(2), S(44, 4), 0, 4 + 16 * n))
            b.append(raw("s_endpgm"))
        for n in range(16): b += [vop("v_mov_b32", V(8 + n), S(80 + n))]
        b += [vop("v_mov_b32", V(2), 0), setexec(1)]
        for n in range(4): b.append(vst("buffer_store_dwordx4", V(8 + 4 * n, 4), V(2), S(40, 4), sT[0], 16 * n))
    b += [label("L_end"), raw("s_endpgm")]

def maxpass(p):
    b = p.block("max_pre")
    b.append(label("L_maxpass"))
    b += [smov(sPASS, 1), smov(sCNT, 32), smov(sKV, 0), bar()]
    for t in range(7): b.append(vop("v_mov_b32", vL[t], "0xff800000"))
    b = p.block("max_loop")
    b.append(label("L_maxl"))
    for pp in range(8):
        b += [salu("s_add_u32", M0, sMK, pp * 1024), dma(vKD[pp & 1], SRD_KV, sKV, 0, CFG['kv_flags']), salu("s_add_u32", sKV, sKV, sC1K)]
    b += [waitall(), bar()]
    for f in range(8): b.append(dsr("ds_read_b128", KF(f), vKA[f & 3], (f >> 2) * 4096))
    b += [waitlgkm0(), bar()]
    for t in range(7):
        s = SB(t & 1)
        for kt in range(2):
            for ds in range(4):
                d = s[4*kt:4*kt+4]
                b.append(mfma(d, KF(4 * kt + ds), QF(t, ds), 0 if ds == 0 else d))
        for n in range(0, 8, 2): b.append(vop("v_max3_f32", vL[t], vL[t], s[n:n+1], s[n+1:n+2]))
    b += [salu("s_sub_u32", sCNT, sCNT, 1), scmp("s_cmp_lg_u32", sCNT, 0), br("s_cbranch_scc1", "L_maxl")]
    b = p.block("max_post")
    lane_reduce(b, vL, [V(32 + t) for t in range(7)], "v_max_f32")
    for t in range(7):
        for r in NEGM(t): b.append(vop("v_sub_f32", [r], 0, vL[t]))
    b.append(smov(sKV, 0))
    for tile in range(4):
        for c, ins in kv_ops(tile): b.append(ins)
    for t in range(7): b.append(vop("v_mov_b32", vL[t], 0))
    if CFG['trace']: b.append(smov(sTRI, 32))
    b += [waitvm(('P', 7)), bar()]
    for f in range(8): b.append(dsr("ds_read_b128", KF(f), vKA[f & 3], (f >> 2) * 4096))
    b.append(smov(sCNT, 7))
    for G in range(-8, 0): b.append(at_mfma(G))
    b.append(br("s_branch", "L_at"))

def build(cfg=None):
    CFG.clear(); CFG.update(DEFAULT); CFG.update(cfg or {})
    p = Program()
    prologue(p); qproj(p); attention(p); check_store_handoff(p); oproj(p); maxpass(p)
    E = lambda *n: [(x, {}) for x in n]
    main = E("pro", "ep1", "pro2", "ep2", "pro3") + [("qp_loop", {'W': 4 * k, 'X': 2 * k}) for k in range(7)] + E("qp_tail", "tagspin", "tagspin", "qp_tail2", "pub", "qp_tail3")
    at = E("at_entry") + [("at_loop", {'P': CFG['ng'] * k, 'T': 32 * k}) for k in range(7)] + E("at_tail", "check")
    fb = E("max_pre", "max_loop", "max_loop", "max_post")
    st = E("store", "st_slow", "flag0") if CFG['local'] else E("store", "flag1")
    rest = E("handoff", "poll", "poll", "op_pro") + [("op_loop", {'W2': 4 * k, 'O2': 4 * k}) for k in range(7)] + E("op_tail")
    drop = lambda tr, *n: [x for x in tr if x[0] not in n]
    fast = lambda tr: [({'st_slow': 'st_fast', 'flag0': 'flag1'}.get(x[0], x[0]), x[1]) for x in tr]
    traces = []
    for body in (main + at + st + rest, main + at + fb + at + st + rest):
        for f in ((lambda t: t), fast) if CFG['local'] else ((lambda t: t),):
            for d in ((), ('ep1', 'ep2', 'pub', 'flag0', 'flag1'), ('tagspin',), ('tagspin', 'ep1', 'ep2'), ('tagspin', 'ep1', 'ep2', 'pub', 'flag0', 'flag1')):
                traces.append(drop(f(body), *d))
    for tr in traces: p.insert_waits(tr)
    n = 0
    for tr in traces: n += p.fix_hazards(tr, verbose=CFG.get('verbose'))
    return p, n
```

```python
from core import *
import atpat, struct

def f2u(x): return struct.unpack("<I", struct.pack("<f", x))[0]
RING = lambda r: r * 40960
DEFAULT = dict(kv_flags="nt", x_flags="", w_flags="", o_flags="sc1", o2_flags="sc1", w2_flags="", out_flags="sc1", early_flags="", pf_wo_flags="",
               stamps=False, trace=False, local=False, thr=3, thr_tail=None, pat='PAT2', ne=2, pf0=6, pfs=0, kfill=5, ng=32, sleep=1, op_hi=52, opm=True,
               wo_gaps=(29 * 112 + 52, 30 * 112 + 14), tlb=0)
CFG = dict(DEFAULT)
M0 = 'm0'
FLAGS = 0x2000000
OOB = "0x40000000"
SRD_X, SRD_W, SRD_KV, SRD_F, SRD_O = S(4, 4), S(8, 4), S(12, 4), S(16, 4), S(20, 4)
SRD_O2, SRD_W2, SRD_C = S(4, 4), S(8, 4), S(20, 4)
sWAVE, sHH, sRHO = S(24), S(25), S(26)
sX, sW, sKV = S(27), S(28), S(29)
sO2, sW2 = S(27), S(28)
sMX, sMW, sMK, sMA = S(30), S(31), S(32), S(33)
sCNT, sPASS = S(34), S(35)
KP = lambda i: S(36 + 2 * i, 2)
sSCALE = S(62)
sC7F, sC1K = S(63), S(75)
sT = [S(64 + i) for i in range(5)]
sKH, sKO, sDH, sDO = S(69), S(70), S(71), S(76)
sNON, sXW = S(71), S(76)
sBLK, sB, sHP = S(72), S(73), S(74)
sWOP, sSLOT, sXCC, sFAST, sTRI, sPM = S(77), S(78), S(79), S(97), S(96), S(69)
vWA = [V(1 + i) for i in range(8)]
vXA = [V(9), V(10)]
vKD = [V(13), V(14)]
vTMP = [V(15), V(16)]
vXD = [V(17 + i) for i in range(7)]
vWD = [V(24 + i) for i in range(4)]
vB = [V(28), V(29), V(30), V(31)]
ACC = lambda dt, qt: V(32 + (qt * 8 + dt) * 4, 4)
QA = lambda dt: A(176 + 4 * dt, 4)
QB = lambda buf, qt: A((208 if buf == 0 else 0) + 4 * qt, 4)
QA31 = lambda dt: A(28 + 4 * dt, 4)
QB31 = lambda qt: A(236 + 4 * qt, 4) if qt < 5 else (A(60, 4) if qt == 5 else A(160, 4))
vKA = [V(1 + i) for i in range(4)]
vVA = [V(5 + i) for i in range(8)]
vL = [V(17 + i) for i in range(7)]
PB = lambda buf: V(24 + 4 * buf, 4)
SB = lambda buf: V(32 + 8 * buf, 8)
NEGM = lambda t: V(48 + 4 * t, 4)
def OT(t, dt): return V(96 + 32 * t + 4 * dt, 4) if t < 5 else A(32 * (t - 5) + 4 * dt, 4)
QF = lambda t, ds: A(64 + 16 * t + 4 * ds, 4)
KF = lambda f: A(176 + 4 * f, 4)
VF = lambda dt: A(208 + 4 * dt, 4)
vLN, vDUM, vXC, vXO = V(88), V(89), V(80), V(81)
vWA2 = [V(1 + i) for i in range(8)]
vWD2 = [V(9 + i) for i in range(8)]
vOD = [V(17), V(18)]
vR = [V(19 + i) for i in range(4)]
vC = V(23)
ACC2 = lambda n, qt: V(32 + (n * 7 + qt) * 4, 4)
FA = lambda n: A(4 * n, 4)
FA31 = lambda n: A(144 + 4 * n, 4)
FB = lambda buf, qt: A(32 + 28 * buf + 4 * qt, 4)

vop = valu
def smul(d, a, b): return salu("s_mul_i32", d, a, b, scc=False)
def csel(d, a, b): return Ins(f"s_cselect_b32 {op(d)}, {op(a)}, {op(b)}", 'salu', w=regs_of(d), r=regs_of(a, b) + [('scc', 0)])
def setexec(v): return raw(f"s_mov_b64 exec, {v}", 'salu', w=[('exec', 0)])
def srd(b, dst, ptr, off, size):
    b.append(salu("s_add_u32", [dst[0]], [ptr[0]], off))
    b.append(Ins(f"s_addc_u32 {rt([dst[1]])}, {rt([ptr[1]])}, 0", 'salu', w=[dst[1], ('scc', 0)], r=[ptr[1], ('scc', 0)]))
    b.append(smov([dst[2]], size)); b.append(smov([dst[3]], "0x20000"))
def stamp(b, n):
    if CFG['stamps']:
        b += [raw("s_memrealtime s[100:101]"), waitlgkm0(), smov(S(80 + n), S(100))]
        if n in CFG.get('cyc', ()): b += [raw("s_memtime s[98:99]"), waitlgkm0(), smov(S(92 + CFG['cyc'].index(n)), S(98))]
def thr(n): return Ins(f"s_waitcnt vmcnt({n})", 'thr', tag=n)
def touch(dst, voff, srd_, soff, fl=""):
    i = vld("buffer_load_dword", dst, voff, srd_, soff, 0, fl); i.w = []
    return i
def place(gaps, seq, free, lo, hi):
    ng = sum(c == 'G' for c, _ in seq)
    gpos = [free[(n * len(free)) // ng] for n in range(ng)] if ng else []
    assert len(set(gpos)) == ng, (ng, len(free))
    n = 0
    for c, ins in seq:
        if c == 'G': gaps[gpos[n]].append(ins); n += 1
        elif c == 'T': gaps[gpos[n]].append(ins)
        else:
            prev = gpos[n - 1] if n else lo
            nxt = gpos[n] if n < ng else hi
            if prev + 1 < nxt:
                gg = gaps[nxt - 1 if nxt < hi else prev + 1]
                k = 0
                while k < len(gg) and gg[k].kind in ('salu', 'waitvm', 'waitlgkm0', 'bar'): k += 1
                gg.insert(k, ins)
            else: gaps[prev].append(ins)

def prologue(p):
    b = p.block("pro")
    b += [scmp("s_cmp_ge_u32", S(2), 256), br("s_cbranch_scc1", "L_end")]
    stamp(b, 0)
    b += [raw("s_load_dwordx16 s[36:51], s[0:1], 0", w=S(36, 16)), raw("s_load_dwordx8 s[52:59], s[0:1], 64", w=S(52, 8)),
          raw("s_load_dwordx2 s[60:61], s[0:1], 96", w=S(60, 2))]
    lane, i16, g, r_, c_ = V(28), V(29), V(30), V(31), V(11)
    tmp, tmp2 = V(12), V(1)
    b += [vop("v_lshrrev_b32", tmp, 6, V(0)), vop("v_and_b32", lane, 63, V(0)), vop("v_readfirstlane_b32", sWAVE, tmp),
          vop("v_and_b32", i16, 15, lane), vop("v_lshrrev_b32", g, 4, lane)]
    b += [salu("s_lshr_b32", sHH, sWAVE, 1), salu("s_and_b32", sRHO, sWAVE, 1)]
    j_, t0, t1, t2, t3 = sT
    b += [salu("s_and_b32", t0, S(2), 7), salu("s_lshr_b32", j_, S(2), 3), salu("s_lshr_b32", sBLK, t0, 2)]
    if CFG['local']:
        b += [salu("s_and_b32", sB, t0, 3), salu("s_lshl_b32", sB, sB, 1), salu("s_and_b32", t1, j_, 1), salu("s_add_u32", sB, sB, t1), salu("s_lshr_b32", sHP, j_, 1)]
    else:
        b += [salu("s_and_b32", sB, t0, 1), salu("s_lshl_b32", sB, sB, 2), salu("s_and_b32", t1, j_, 3), salu("s_add_u32", sB, sB, t1),
              salu("s_bfe_u32", sHP, t0, "0x10001"), salu("s_lshl_b32", sHP, sHP, 3), salu("s_lshr_b32", t1, j_, 2), salu("s_add_u32", sHP, sHP, t1)]
    b += [salu("s_lshl_b32", sSLOT, sBLK, 3), salu("s_add_u32", sSLOT, sSLOT, sB), salu("s_lshl_b32", sSLOT, sSLOT, 4), salu("s_add_u32", sSLOT, sSLOT, sHP)]
    b += [salu("s_lshl_b32", sWOP, j_, 2), salu("s_and_b32", t1, S(2), 3), salu("s_add_u32", sWOP, sWOP, t1), salu("s_lshl_b32", sWOP, sWOP, 2),
          salu("s_add_u32", sWOP, sWOP, sWAVE), salu("s_lshl_b32", sWOP, sWOP, 14)]
    b += [smul(t0, sHH, 40960), salu("s_lshl_b32", t1, sRHO, 12), salu("s_add_u32", sMW, t0, t1), salu("s_add_u32", sMW, sMW, RING(2) + 8192),
          smul(t2, sRHO, 7168), salu("s_add_u32", sMX, t0, t2), salu("s_add_u32", sMX, sMX, 8192),
          smul(t2, sRHO, RING(2)), salu("s_add_u32", sMK, t0, t2), smul(sMA, sWAVE, 40960)]
    b += [salu("s_lshl_b32", t3, sRHO, 4), vop("v_add_u32", tmp, t3, g), vop("v_lshlrev_b32", tmp, 13, tmp),
          salu("s_lshl_b32", t3, sHH, 8), vop("v_add_u32", tmp, t3, tmp),
          vop("v_lshlrev_b32", tmp2, 1, g), vop("v_xor_b32", tmp2, tmp2, i16), vop("v_lshlrev_b32", V(2), 4, tmp2), vop("v_xor_b32", V(3), 128, V(2))]
    for pp in range(4):
        b += [vop("v_add_u32", vWD[pp], tmp, V(2) if pp < 2 else V(3)), vop("v_add_u32", vWD[pp], pp * 32768 - pp * 1024, vWD[pp])]
    b += [vop("v_lshrrev_b32", tmp, 3, lane), smul(t2, sHH, 112), smul(t3, sRHO, 56), salu("s_add_u32", t2, t2, t3),
          vop("v_add_u32", tmp, t2, tmp), vop("v_lshlrev_b32", tmp, 11, tmp),
          vop("v_and_b32", tmp2, 7, lane), vop("v_xor_b32", tmp2, tmp2, g), salu("s_lshl_b32", t3, sRHO, 2),
          vop("v_xor_b32", tmp2, t3, tmp2), vop("v_lshlrev_b32", V(2), 4, tmp2), vop("v_xor_b32", V(3), 64, V(2))]
    for pp in range(7):
        b += [vop("v_add_u32", vXD[pp], tmp, V(2) if pp % 2 == 0 else V(3)), vop("v_add_u32", vXD[pp], pp * 16384 - (pp & 3) * 1024, vXD[pp])]
    b += [smov(sX, 0), smov(sW, 0), vop("v_mov_b32", vTMP[0], 0), waitlgkm0()]
    b.append(scmp("s_cmp_eq_u32", sBLK, 0))
    for i in (3, 0, 1, 2, 4):
        for hl in range(2): b.append(csel(S(36 + 2 * i + hl), S(36 + 2 * i + hl), S(46 + 2 * i + hl)))
    b += [salu("s_lshl_b32", t0, sHP, 9), salu("s_sub_u32", t2, 8388608, t0)]; srd(b, SRD_W, KP(3), t0, t2)
    b += [smul(t0, sB, 458752)]; srd(b, SRD_X, KP(0), t0, 458752)
    def ldx(pair):
        for pp in range(7):
            if pp % 4 == 0: b.append(salu("s_add_u32", M0, sMX, (pair & 1) * 18432 + (pp >> 2) * 4096))
            b.append(dma(vXD[pp], SRD_X, sX, (pp & 3) * 1024, CFG['x_flags'], tag=('X', pair)))
        b.append(salu("s_add_u32", sX, sX, 128))
    def ldw(ks):
        b.append(salu("s_add_u32", M0, sMW, (ks & 3) * 8192))
        for pp in range(4): b.append(dma(vWD[pp], SRD_W, sW, pp * 1024, CFG['w_flags'], tag=('W', ks)))
        b.append(salu("s_add_u32", sW, sW, 262144))
    ldw(0); ldx(0)
    srd(b, SRD_F, KP(12), FLAGS, 4096 + 256 * 128)
    b += [salu("s_or_b32", t0, sSLOT, sWAVE), scmp("s_cmp_lg_u32", t0, 0), br("s_cbranch_scc1", "L_ep1")]
    b = p.block("ep1")
    b.append(vld("buffer_load_dword", vTMP[1], vTMP[0], SRD_F, 0, 0, "sc1"))
    b = p.block("pro2")
    b.append(label("L_ep1"))
    ldw(1); ldx(1); ldw(2); ldw(3)
    b += [vop("v_and_b32", tmp2, 2, g), vop("v_lshlrev_b32", tmp2, 1, tmp2), vop("v_and_b32", V(2), 1, g), vop("v_or_b32", tmp2, tmp2, V(2)),
          vop("v_lshlrev_b32", V(2), 1, g), scmp("s_cmp_eq_u32", sRHO, 0), Ins("s_cselect_b64 vcc, -1, 0", 'salu', w=[('vcc', 0)], r=[('scc', 0)]),
          vop("v_cndmask_b32", tmp2, V(2), tmp2, 'vcc'), vop("v_xor_b32", tmp2, tmp2, i16), vop("v_lshlrev_b32", tmp2, 4, tmp2),
          vop("v_lshl_add_u32", vKD[0], g, 8, tmp2), vop("v_xor_b32", vKD[1], 128, vKD[0])]
    for hl in range(2): b.append(csel(S(38 + hl), S(38 + hl), S(40 + hl)))
    b += [salu("s_lshl_b32", t0, sB, 5), salu("s_lshl_b32", t2, sHP, 1), salu("s_add_u32", t0, t0, t2), salu("s_add_u32", t0, t0, sHH), salu("s_lshl_b32", t0, t0, 18)]
    srd(b, SRD_KV, KP(1), t0, 262144)
    b += [salu("s_lshr_b32", t0, sSLOT, 4), salu("s_lshl_b32", t0, t0, 1), salu("s_add_u32", t0, t0, sRHO), salu("s_lshl_b32", t0, t0, 5),
          salu("s_lshl_b32", t2, sHP, 1), salu("s_add_u32", t0, t0, t2), salu("s_add_u32", t0, t0, sHH), smul(t0, t0, 28672)]
    srd(b, SRD_O, KP(12), t0, 28672)
    b += [Ins("s_getreg_b32 s79, hwreg(HW_REG_XCC_ID, 0, 4)", 'salu', w=sXCC), smov(sPASS, 0), smov(sSCALE, hex(f2u(1.4426950408889634 / 128 ** 0.5))),
          smov(sC7F, "0x7fff"), smov(sC1K, 1024)]
    if CFG['tlb']:
        T4, pg = S(64, 4), V(35)
        b += [vop("v_lshlrev_b32", pg, 20, lane), touch(A(255), pg, SRD_KV, 0), touch(A(255), pg, SRD_W, 0), touch(A(255), pg, SRD_F, sC1K, 'sc1')]
        srd(b, T4, KP(4), 0, 8388608); b.append(touch(A(255), pg, T4, 0))
        b += [salu("s_lshr_b32", t3, sSLOT, 4), smul(t3, t3, 1835008)]; srd(b, T4, KP(12), t3, 1835008); b.append(touch(A(255), pg, T4, 0, 'sc1'))
        b += [smov(t3, 1835004), touch(A(255), vTMP[0], T4, t3, 'sc1')]
        b += [smul(t3, sB, 917504)]; srd(b, T4, KP(10), t3, 917504); b.append(touch(A(255), pg, T4, 0))
        b += [smov(t3, 917500), touch(A(255), vTMP[0], T4, t3)]
        srd(b, T4, KP(11), 0, 256); b += [smov(t3, 128), touch(A(255), vTMP[0], T4, t3, 'sc1')]
    b += [vop("v_lshrrev_b32", tmp, 1, i16), vop("v_xor_b32", tmp, tmp, g), vop("v_lshlrev_b32", tmp, 4, tmp), vop("v_lshlrev_b32", tmp2, 7, i16),
          smul(t0, sRHO, 40960), salu("s_add_u32", t0, t0, 8192),
          vop("v_add_u32", tmp2, t0, tmp2), vop("v_add_u32", vXA[0], tmp2, tmp), vop("v_xor_b32", tmp, 64, tmp), vop("v_add_u32", vXA[1], tmp2, tmp)]
    a_, b_ = V(33), V(34)
    b += [vop("v_bfe_u32", r_, lane, 2, 2), vop("v_and_b32", c_, 3, lane), smul(t0, sHH, 40960), salu("s_add_u32", t1, t0, RING(2) + 8192),
          vop("v_lshl_add_u32", tmp, g, 3, r_), vop("v_lshlrev_b32", tmp, 8, tmp), vop("v_lshl_add_u32", tmp, c_, 3, tmp), vop("v_add_u32", tmp, t1, tmp),
          vop("v_and_b32", a_, 1, g), vop("v_lshl_add_u32", a_, a_, 2, r_), vop("v_lshlrev_b32", a_, 5, a_)]
    for dt in range(8): b += [vop("v_xor_b32", vWA[dt], dt * 32, a_), vop("v_add_u32", vWA[dt], tmp, vWA[dt])]
    b += [vop("v_lshl_add_u32", a_, g, 2, r_), vop("v_lshlrev_b32", a_, 8, a_), vop("v_lshl_add_u32", a_, c_, 3, a_), salu("s_add_u32", t1, t0, RING(2)),
          vop("v_add_u32", vB[3], t1, a_),
          vop("v_and_b32", a_, 1, g), vop("v_lshlrev_b32", a_, 1, a_), vop("v_lshrrev_b32", b_, 1, g), vop("v_or_b32", a_, a_, b_),
          vop("v_and_b32", b_, 1, i16), vop("v_xor_b32", a_, a_, b_), vop("v_and_b32", b_, 6, i16), vop("v_lshlrev_b32", b_, 1, b_), vop("v_xor_b32", a_, a_, b_),
          vop("v_lshlrev_b32", vB[0], 4, a_), vop("v_lshlrev_b32", b_, 8, i16), vop("v_add_u32", vB[1], t0, b_)]
    for r in range(32, 256, 2): b.append(vop("v_mov_b64", V(r, 2), 0))
    b += [smov(sCNT, 7), smov(sKH, 0), smov(sDH, 0), smov(sKO, CFG['pf0'] * 8192 if CFG['pfs'] else OOB), smov(sDO, CFG['pfs'] * 8192),
          salu("s_or_b32", t0, sSLOT, sWAVE), scmp("s_cmp_lg_u32", t0, 0), br("s_cbranch_scc1", "L_ep2")]
    b = p.block("ep2")
    srd(b, S(64, 4), KP(11), 0, 256)
    b += [vop("v_add_u32", vTMP[1], 1, vTMP[1]), vop("v_max_u32", vTMP[1], 1, vTMP[1]), setexec(1),
          vst("buffer_store_dword", vTMP[1], vTMP[0], SRD_F, 0, 0, "sc1"), vst("buffer_store_dword", vTMP[1], vTMP[0], S(64, 4), 0, 0, "sc1"), setexec(-1)]
    b = p.block("pro3")
    b.append(label("L_ep2"))
    if CFG.get('dbgq') is not None: b += [smov(sTRI, 2), vop("v_and_b32", V(16), 63, V(0)), vop("v_mov_b32", V(11), S(80))]
    b += [waitvm(('X', 0), ('W', 0)), bar()]
    for qt in range(7): b.append(dsr("ds_read_b128", QB(0, qt), vXA[0], qt * 2048))
    for dt in range(8):
        for h in range(2): b.append(dsr("ds_read_b64_tr_b16", QA(dt)[2*h:2*h+2], vWA[dt], h * 1024))
    stamp(b, 1)

def kv_ops(tile, thr_=None):
    o = []
    for pp in range(8):
        o += [('S', salu("s_and_b32", sPM, sKV, sC7F)), ('S', salu("s_add_u32", M0, sMK, sPM))]
        if thr_ is not None: o.append(('T', thr(thr_)))
        o += [('G', dma(vKD[pp & 1], SRD_KV, sKV, 0, CFG['kv_flags'], tag=('P', 8 * tile + pp))), ('S', salu("s_add_u32", sKV, sKV, sC1K))]
    return o

A_GAPS = [7 * dt + 6 for dt in range(8)]
D_GAPS = [8, 15, 22, 29, 36, 43, 50]
def qp_step(b, s, srel, kv=None, extra=(), early=None, both=False):
    gaps = [[] for _ in range(56)]
    used = []
    w = waitvm(('W', srel + 1))
    if (s + 1) % 2 == 0: w.need.append(('X', (srel + 1) // 2))
    if both:
        w.need.append(('W', srel + 2))
        for dt, g in enumerate((9, 16, 23, 30, 37, 44, 51, 53)):
            used.append(g)
            for h in range(2): gaps[g].append(dsr("ds_read_b64_tr_b16", QA31(dt)[2*h:2*h+2], vWA[dt], ((s + 2) & 3) * 8192 + h * 1024))
        for qt, g in enumerate((11, 18, 25, 32, 39, 46, 52)):
            used.append(g)
            gaps[g].append(dsr("ds_read_b128", QB31(qt), vXA[1], 18432 + qt * 2048))
    gaps[5] += [w, waitlgkm0()]
    gaps[6].append(bar())
    if CFG.get('dbgq') is not None and s < 28 and s % 2 == 1:
        gaps[7].append(raw("s_memrealtime s[100:101]"))
        gaps[40] += [waitlgkm0(), vop("v_cmp_eq_u32", 'vcc', sTRI, V(16)), vop("v_mov_b32", V(12), S(100)), salu("s_add_u32", sTRI, sTRI, 1), vop("v_cndmask_b32", V(11), V(11), V(12), 'vcc')]
    for dt in range(8):
        for h in range(2): gaps[A_GAPS[dt]].append(dsr("ds_read_b64_tr_b16", QA(dt)[2*h:2*h+2], vWA[dt], ((s + 1) & 3) * 8192 + h * 1024))
    pair, par = (s + 1) >> 1, (s + 1) & 1
    for qt, g in enumerate(D_GAPS):
        gaps[g].append(dsr("ds_read_b128", QB((s + 1) & 1, qt), vXA[par], (pair & 1) * 18432 + qt * 2048))
    seq = []
    if early is not None:
        for n in range(early):
            seq += [('S', salu("s_add_u32", M0, sMK, sKH)), ('G', dma(vKD[n & 1], SRD_KV, sKO, 0, CFG['early_flags'], tag=('P', 7))),
                    ('S', salu("s_add_u32", sKH, sKH, sDH)), ('S', salu("s_add_u32", sKO, sKO, sDO))]
    if s % 2 == 1 and (s + 3) // 2 <= 15:
        pair = (s + 3) // 2
        for pp in range(7):
            if pp % 4 == 0: seq.append(('S', salu("s_add_u32", M0, sMX, (pair & 1) * 18432 + (pp >> 2) * 4096)))
            seq.append(('G', dma(vXD[pp], SRD_X, sX, (pp & 3) * 1024, CFG['x_flags'], tag=('X', (srel + 3) // 2))))
        seq.append(('S', salu("s_add_u32", sX, sX, 128)))
    if s + 4 <= 31:
        seq.append(('S', salu("s_add_u32", M0, sMW, (s & 3) * 8192)))
        for pp in range(4): seq.append(('G', dma(vWD[pp], SRD_W, sW, pp * 1024, CFG['w_flags'], tag=('W', srel + 4))))
        seq.append(('S', salu("s_add_u32", sW, sW, 262144)))
    if kv is not None: seq += kv_ops(kv, CFG['thr_tail'])
    free = [g for g in range(9, 55) if g not in A_GAPS and g not in D_GAPS and g not in used]
    place(gaps, seq, free, 7, 56)
    for g, ins in extra: gaps[g].append(ins)
    for j in range(56):
        dt, qt = divmod(j, 7)
        b.append(mfma(ACC(dt, qt), QA(dt), QB(s & 1, qt), ACC(dt, qt)))
        b += gaps[j]

def conv_ops(qt):
    st = []
    for ds in range(4):
        t0, t1 = ACC(2 * ds, qt), ACC(2 * ds + 1, qt)
        q = QF(qt, ds)
        st.append(([vop("v_mul_f32", [r], sSCALE, [r]) for r in t0 + t1],
                   [vop("v_cvt_pk_bf16_f32", t[n:n+1], t[2*n:2*n+1], t[2*n+1:2*n+2]) for t in (t0, t1) for n in range(2)],
                   [perm("v_permlane16_swap_b32", t0[0:1], t1[0:1]), perm("v_permlane16_swap_b32", t0[1:2], t1[1:2])],
                   [vop("v_accvgpr_write_b32", q[n:n+1], src) for n, src in enumerate((t0[0:1], t0[1:2], t1[0:1], t1[1:2]))]))
    o = []
    for u, k in ((0,0),(1,0),(0,1),(2,0),(1,1),(0,2),(3,0),(2,1),(1,2),(0,3),(3,1),(2,2),(1,3),(3,2),(2,3),(3,3)):
        o += [(16 * qt + 4 * u + 5, i) for i in st[u][k]]
    return o

def qproj(p):
    b = p.block("qp_loop")
    b.append(label("L_qp"))
    for s in range(4): qp_step(b, s, s, early=CFG['ne'] if s % 2 == 0 else None)
    nreal = 8 // (2 * CFG['ne'])
    b += [scmp("s_cmp_eq_u32", sCNT, nreal + 1), csel(sKO, 0, sKO), csel(sDO, 1024, sDO), csel(sDH, 1024, sDH),
          salu("s_sub_u32", sCNT, sCNT, 1), scmp("s_cmp_lg_u32", sCNT, 0), br("s_cbranch_scc1", "L_qp")]
    b = p.block("qp_tail")
    if CFG.get('dbgq') is not None:
        srd(b, S(64, 4), KP(11), 0, 64)
        b += [vop("v_cmp_eq_u32", 'vcc', 1, V(16)), vop("v_mov_b32", V(12), S(81)), nop(1), vop("v_cndmask_b32", V(11), V(11), V(12), 'vcc'), vop("v_subrev_u32", V(11), S(80), V(11)),
              vop("v_lshlrev_b32", V(12), 2, V(16)), salu("s_lshl_b32", sT[4], S(2), 2), salu("s_add_u32", sT[4], sT[4], sWAVE),
              scmp("s_cmp_eq_u32", sT[4], CFG['dbgq'] * 4), csel(sT[4], 0, OOB), raw("s_mov_b64 exec, 0xfffe", 'salu', w=[('exec', 0)]),
              vst("buffer_store_dword", V(11), V(12), S(64, 4), sT[4], 0), setexec(-1)]
    srd(b, S(64, 4), KP(11), 0, 256)
    b += [smov(sKV, 8192), vld("buffer_load_dword", vTMP[1], vTMP[0], S(64, 4), 0, 0, "sc1")]
    qp_step(b, 28, 28)
    b += [vop("v_readfirstlane_b32", sNON, vTMP[1]), smov(sCNT, "0x200000"), scmp("s_cmp_lg_u32", sNON, 0), br("s_cbranch_scc1", "L_tag")]
    b = p.block("tagspin")
    b += [label("L_tagspin"), raw("s_sleep 4"), vld("buffer_load_dword", vTMP[1], vTMP[0], S(64, 4), 0, 0, "sc1"), waitall(), vop("v_readfirstlane_b32", sNON, vTMP[1]),
          salu("s_sub_u32", sCNT, sCNT, 1), scmp("s_cmp_eq_u32", sCNT, 0), br("s_cbranch_scc1", "L_tag"),
          scmp("s_cmp_eq_u32", sNON, 0), br("s_cbranch_scc1", "L_tagspin")]
    b = p.block("qp_tail2")
    b.append(label("L_tag"))
    b += [salu("s_add_u32", sXW, sXCC, 1), salu("s_lshl_b32", sXW, sXW, 24), salu("s_add_u32", sXW, sXW, sNON),
          salu("s_lshl_b32", sSLOT, sSLOT, 7), salu("s_add_u32", sSLOT, sSLOT, 4096), vop("v_mov_b32", vTMP[1], sXW),
          scmp("s_cmp_lg_u32", sWAVE, 0), br("s_cbranch_scc1", "L_nopub")]
    b = p.block("pub")
    b += [setexec(1), vst("buffer_store_dword", vTMP[1], vTMP[0], SRD_F, sSLOT, 4, "sc1"), setexec(-1)]
    b = p.block("qp_tail3")
    b.append(label("L_nopub"))
    qp_step(b, 29, 29, kv=1, both=True)
    gaps = [[] for _ in range(112)]
    gaps[5] += [waitvm(('P', 7)), waitlgkm0()]; gaps[6].append(bar())
    place(gaps, kv_ops(2, CFG['thr_tail']) + kv_ops(3, CFG['thr_tail']), list(range(9, 92)), 7, 112)
    for f in range(8): gaps[96 + 2 * f + 1].append(dsr("ds_read_b128", KF(f), vKA[f & 3], (f >> 2) * 4096))
    q = []
    for ds in range(4): q += [(0, vop("v_xor_b32", vKA[ds], ds * 64, vB[0])), (0, vop("v_add_u32", vKA[ds], vB[1], vKA[ds]))]
    q += [(0, vop("v_lshrrev_b32", vB[0], 4, V(0))), (0, vop("v_and_b32", vB[0], 1, vB[0])), (0, vop("v_bfe_u32", vB[1], V(0), 2, 2)),
          (0, vop("v_lshl_add_u32", vB[0], vB[0], 2, vB[1])), (0, vop("v_lshlrev_b32", vB[0], 5, vB[0]))]
    for dt in range(8): q += [(0, vop("v_xor_b32", vVA[dt], dt * 32, vB[0])), (0, vop("v_add_u32", vVA[dt], vB[3], vVA[dt]))]
    for t in range(7): q.append((0, vop("v_mov_b32", vL[t], 0)))
    for qt in range(7):
        q += conv_ops(qt)
        if qt == 1:
            for t in range(7):
                for n in (0, 2): q.append((0, vop("v_mov_b64", NEGM(t)[n:n+2], 0)))
            q += [(0, vop("v_and_b32", vLN, 63, V(0))), (0, vop("v_and_b32", vXO, 15, V(0))), (0, vop("v_lshlrev_b32", vLN, 7, vLN)), (0, vop("v_lshlrev_b32", vXO, 7, vXO))]
    sc = []
    srd(sc, SRD_X, KP(4), 0, 8388608)
    for n, ins in enumerate(sc): gaps[1 + n // 2].append(ins)
    g = 1
    while q and g < 112:
        room = CFG['kfill'] - 2 * sum(i.kind in VM for i in gaps[g]) - sum(i.kind in LG for i in gaps[g])
        while q and room > 0 and q[0][0] <= g:
            gaps[g].append(q.pop(0)[1]); room -= 1
        g += 1
    for j in range(112):
        qt, r = divmod(j, 16); dt, k = divmod(r, 2)
        b.append(mfma(ACC(dt, qt), QA31(dt) if k else QA(dt), QB31(qt) if k else QB(0, qt), ACC(dt, qt)))
        b += gaps[j]
    if CFG['trace']: b += [smov(sTRI, 32), vop("v_mov_b32", V(95), 0), vop("v_and_b32", V(94), 63, V(0))]
    stamp(b, 2)
    if CFG['ng'] != 32 or True: b.append(smov(sCNT, 7))
    stamp(b, 3)
    rest = [i for _, i in q]
    per = (len(rest) + 7) // 8
    for G in range(-8, 0):
        b.append(at_mfma(G))
        b += rest[:per]; rest = rest[per:]

def at_ins(key, i):
    k = key[0]
    if not 0 <= i <= 31: return None
    if k in 'ECA':
        t = int(key[1]); j = int(key[2]); n = 7 * i + t
        s = SB(n & 1)
        if k == 'E': return [trans("v_exp_f32", s[j:j+1], s[j:j+1])]
        if k == 'A': return [vop("v_add_f32", vL[t], vL[t], s[j:j+1])]
        return [vop("v_cvt_pk_bf16_f32", PB(n & 1)[j:j+1], s[2*j:2*j+1], s[2*j+1:2*j+2])]
    if k == 'V':
        dt, h = int(key[1]), int(key[2])
        o = [dsr("ds_read_b64_tr_b16", VF(dt)[2*h:2*h+2], vVA[dt], (i & 3) * 8192 + h * 4096)]
        if CFG['trace'] and key == 'V00' and i > 0:
            o += [vop("v_cmp_eq_u32", 'vcc', sTRI, V(94)), vop("v_mov_b32", V(93), S(100)), salu("s_add_u32", sTRI, sTRI, 1), vop("v_cndmask_b32", V(95), V(95), V(93), 'vcc')]
        return o
    if i + 1 > 31: return None
    if k == 'K':
        f = int(key[1])
        return [dsr("ds_read_b128", KF(f), vKA[f & 3], ((i + 1) & 3) * 8192 + (f >> 2) * 4096)]
    if k == 'W': return [waitvm(('P', 8 * i + 15, 'T'))]
    if k == 'B': return [bar()] + ([raw("s_memrealtime s[100:101]")] if CFG['trace'] else [])
    raise KeyError(key)

def at_mfma(G):
    n, j = divmod(G, 16)
    if j < 8:
        m = n - 1
        if not 0 <= m < 224: return None
        i, t = divmod(m, 7)
        return mfma(OT(t, j), VF(j), PB(m & 1), 0 if i == 0 else OT(t, j))
    m = n + 1
    if not 0 <= m < 224: return None
    i, t = divmod(m, 7)
    kt, ds = divmod(j - 8, 4)
    d = SB(m & 1)[4*kt:4*kt+4]
    return mfma(d, KF(j - 8), QF(t, ds), NEGM(t) if ds == 0 else d)

def at_range(b, g0, g1, pat, gsel, piece):
    pre = {}
    for G in gsel:
        pre.setdefault(G - 2, []).append(salu("s_and_b32", sPM, sKV, sC7F)); pre.setdefault(G - 1, []).append(salu("s_add_u32", M0, sMK, sPM))
        pre.setdefault(G + (2 if G % 112 == 79 else 1), []).insert(0, salu("s_add_u32", sKV, sKV, sC1K))
    for G in range(g0, g1):
        m = at_mfma(G)
        if m is not None: b.append(m)
        b += pre.pop(G, [])
        i, rel = divmod(G, atpat.STEP)
        if G in CFG['wo_gaps']: b += [touch(vDUM, vLN, SRD_X, sWOP, CFG['pf_wo_flags']), salu("s_add_u32", sWOP, sWOP, 8192)]
        if G == 30 * 112 + 52 and CFG['local']:
            b += [salu("s_sub_u32", sT[0], sSLOT, 4096), salu("s_and_b32", sT[0], sT[0], "0xfffff800"), salu("s_add_u32", sT[0], sT[0], 4096),
                  vld("buffer_load_dword", vXC, vXO, SRD_F, sT[0], 4, "sc1")]
        if G in gsel:
            if CFG['thr'] is not None: b.append(thr(CFG['thr']))
            b.append(dma(vKD[(piece - CFG['_par0']) & 1], SRD_KV, sKV, 0, CFG['kv_flags'], tag=('P', piece))); piece += 1
        for key, d in pat[rel]:
            if key[0] in 'GMUY': continue
            ins = at_ins(key, i + d)
            if ins is not None: b += ins
    assert not pre, pre.keys()
    return piece

def attention(p):
    pat, pos, over = atpat.parse(getattr(atpat, CFG['pat']))
    gp = sorted(v % 112 for k, v in pos.items() if k[0] == 'G')
    NG = CFG['ng']
    CFG['_par0'] = 0
    ent = [g for g in gp if g > 80]
    body = [112 * i + g for i in range(1, 6) for g in gp if 120 <= 112 * i + g < 568]
    assert len(body) == 32
    drop = {32: [], 31: [112 * 2 + 27], 30: [112 * 2 + 27, 112 * 4 + 27]}[NG]
    body = [g for g in body if g not in drop]
    n_tail = 256 - 32 - len(ent) - 7 * NG
    tail = [112 * i + g for i in range(29, 31) for g in gp if 112 * i + g >= 3256][:max(0, n_tail)]
    allg = ent + [g + 448 * k for k in range(7) for g in body] + tail
    lead = 10 ** 9
    for n, G in enumerate(allg):
        tile = (32 + n) // 8
        assert G > 112 * (tile - 4) + 80, (n, G)
        if tile <= 31: lead = min(lead, 112 * (tile - 1) + 79 - G)
    CFG['_lead'] = lead
    b = p.block("at_entry")
    b.append(label("L_at"))
    pc = at_range(b, 0, 120, pat, set(ent), 32)
    b = p.block("at_loop")
    b.append(label("L_atl"))
    at_range(b, 120, 568, pat, set(body), pc)
    if NG % 2: b.append(Ins("v_swap_b32 v13, v14", 'valu', w=V(13, 2), r=V(13, 2)))
    b += [salu("s_sub_u32", sCNT, sCNT, 1), scmp("s_cmp_lg_u32", sCNT, 0), br("s_cbranch_scc1", "L_atl")]
    b = p.block("at_tail")
    CFG['_par0'] = (7 * NG) & 1
    at_range(b, 3256, 32 * 112 + 8, pat, set(tail), pc + 7 * NG)
    if (7 * NG) & 1: b.append(Ins("v_swap_b32 v13, v14", 'valu', w=V(13, 2), r=V(13, 2)))
    stamp(b, 4)
    if CFG['trace']: b += [vop("v_accvgpr_write_b32", A(240), V(95))]

def lane_reduce(b, regs, tmps, opname):
    for sw in ("v_permlane16_swap_b32", "v_permlane32_swap_b32"):
        for r, t in zip(regs, tmps): b.append(vop("v_mov_b32", t, r))
        for r, t in zip(regs, tmps): b.append(perm(sw, r, t))
        for r, t in zip(regs, tmps): b.append(vop(opname, r, r, t))

def ld_o2(ks, tag):
    o = [('G', vld("buffer_load_dwordx4", FB(ks & 3, qt), vOD[qt >> 2], SRD_O2, sO2, (qt & 3) * 1024, CFG['o2_flags'], tag=('O2', tag))) for qt in range(7)]
    return o + [('S', salu("s_add_u32", sO2, sO2, 7168))]
def ld_w2(ks, tag):
    o = []
    for pc in range(8):
        if pc % 4 == 0: o.append(('S', salu("s_add_u32", M0, sMA, (ks & 3) * 8192 + (pc >> 2) * 4096)))
        o.append(('G', dma(vWD2[pc], SRD_W2, sW2, (pc & 3) * 1024, CFG['w2_flags'], tag=('W2', tag))))
    return o + [('S', salu("s_add_u32", sW2, sW2, 65536))]

def check_store_handoff(p):
    b = p.block("check")
    tm = [V(32 + 2 * t) for t in range(7)]
    if CFG['local']:
        b += [vop("v_cmp_ne_u32", 'vcc', sXW, vXC), nop(1), salu("s_or_b32", sFAST, 'vcc_lo', 'vcc_hi')]
    lane_reduce(b, vL, tm, "v_add_f32")
    lo, hi, bad = sT[0], sT[1], S(66, 2)
    b += [smov(lo, hex(f2u(2.0 ** -32))), smov(hi, hex(f2u(2.0 ** 32))), raw("s_mov_b64 s[66:67], 0", 'salu', w=bad)]
    for t in range(7):
        b += [vop("v_cmp_nle_f32", 'vcc', lo, vL[t]), vop("v_cmp_nge_f32", S(98, 2), hi, vL[t]), trans("v_rcp_f32", tm[t], vL[t]),
              raw("s_or_b64 s[66:67], s[66:67], vcc", 'salu', w=bad + [('scc', 0)], r=bad + [('vcc', 0)]),
              raw("s_or_b64 s[66:67], s[66:67], s[98:99]", 'salu', w=bad + [('scc', 0)], r=bad + S(98, 2))]
    b += [salu("s_or_b32", sT[0], S(66), S(67)), salu("s_lshl_b32", sT[1], sWAVE, 2), salu("s_add_u32", sT[1], sT[1], RING(0) + 32768),
          vop("v_mov_b32", V(48), sT[1]), vop("v_mov_b32", V(49), sT[0]), vop("v_mov_b32", V(50), RING(0) + 32768),
          dsw("ds_write_b32", V(48), V(49), 0), waitlgkm0(), bar(), dsr("ds_read_b128", V(52, 4), V(50), 0),
          vop("v_and_b32", V(24), 63, V(0)), vop("v_lshlrev_b32", vOD[0], 4, V(24)), vop("v_add_u32", vOD[1], 4096, vOD[0]),
          vop("v_or_b32", V(52), V(52), V(53)), vop("v_or3_b32", V(52), V(52), V(54), V(55)), vop("v_readfirstlane_b32", sT[0], V(52)),
          scmp("s_cmp_eq_u32", sT[0], 0), br("s_cbranch_scc1", "L_store"),
          scmp("s_cmp_eq_u32", sPASS, 0), br("s_cbranch_scc1", "L_maxpass")]
    b = p.block("store")
    b.append(label("L_store"))
    stamp(b, 5)
    lane, i16, g, r_, c_, tmp, tmp2 = V(24), V(25), V(26), V(27), V(28), V(29), V(30)
    def stores(b, flags):
        for t in (5, 0, 6, 1, 2, 3, 4):
            rc = V(32 + 2 * t, 2)
            if t < 5: R = V(96 + 32 * t, 32)
            else:
                R = V(48, 32)
                for n in range(32): b.append(vop("v_accvgpr_read_b32", R[n:n+1], A(32 * (t - 5) + n)))
            for n in range(0, 32, 2): b.append(vop("v_pk_mul_f32", R[n:n+2], R[n:n+2], rc, extra="op_sel_hi:[1,0]"))
            for m in range(4):
                r = R[8*m:8*m+8]
                for n in range(4): b.append(vop("v_cvt_pk_bf16_f32", r[n:n+1], r[2*n:2*n+1], r[2*n+1:2*n+2]))
                off = m * 7168 + t * 1024
                b.append(smov(sT[m % 2], off & ~4095))
                b.append(vst("buffer_store_dwordx4", r[0:4], vOD[0], SRD_O, sT[m % 2], off & 4095, flags, tag=('OST', 0)))
    def publish(b, flags, n):
        stamp(b, 6)
        b += [vop("v_mov_b32", tmp, 0), vop("v_mov_b32", tmp2, sNON), waitvm(('OST', 0)), bar(), scmp("s_cmp_lg_u32", sWAVE, 0), br("s_cbranch_scc1", f"L_noflag")]
        b = p.block(f"flag{n}")
        b += [setexec(1), vst("buffer_store_dword", tmp2, tmp, SRD_F, sSLOT, 0, flags), setexec(-1)]
        return b
    if CFG['local']:
        b += [scmp("s_cmp_eq_u32", sFAST, 0), br("s_cbranch_scc1", "L_stfast")]
        b = p.block("st_slow"); stores(b, CFG['o_flags']); b = publish(b, "sc1", 0); b.append(br("s_branch", "L_noflag"))
        b = p.block("st_fast"); b.append(label("L_stfast")); stores(b, ""); publish(b, CFG.get('flag_fast', ""), 1)
    else:
        stores(b, CFG['o_flags']); publish(b, "sc1", 1)
    b = p.block("handoff")
    b.append(label("L_noflag"))
    stamp(b, 7)
    t0, t1, t2, rho2, ct = sT
    b += [salu("s_and_b32", rho2, sHP, 1), salu("s_lshr_b32", ct, sHP, 1), vop("v_and_b32", i16, 15, lane), vop("v_lshrrev_b32", g, 4, lane)]
    b += [vop("v_lshlrev_b32", tmp, 11, g), vop("v_lshlrev_b32", tmp2, 1, g), vop("v_xor_b32", tmp2, tmp2, i16), vop("v_lshlrev_b32", tmp2, 4, tmp2),
          vop("v_xor_b32", V(31), 128, tmp2)]
    for pc in range(8):
        b += [vop("v_add_u32", vWD2[pc], tmp, tmp2 if pc % 2 == 0 else V(31)), vop("v_add_u32", vWD2[pc], pc * 8192 - (pc & 3) * 1024, vWD2[pc])]
    b += [salu("s_lshl_b32", t0, sWAVE, 21), salu("s_lshl_b32", t1, ct, 8), salu("s_add_u32", t0, t0, t1), salu("s_sub_u32", t2, 2097152, t1)]
    srd(b, SRD_W2, KP(4), t0, t2)
    b.append(smov(sW2, 0))
    for ks in range(CFG.get('w2pre', 2)):
        for c, ins in ld_w2(ks, ks): b.append(ins)
    b += [salu("s_lshl_b32", t0, sBLK, 3), salu("s_add_u32", t0, t0, sB),
          salu("s_lshl_b32", t2, t0, 1), salu("s_add_u32", t2, t2, rho2), salu("s_lshl_b32", t2, t2, 2), salu("s_add_u32", t2, t2, sWAVE), smul(t2, t2, 229376)]
    srd(b, SRD_O2, KP(12), t2, 229376)
    b += [smov(sO2, 0), salu("s_lshl_b32", t0, t0, 11), salu("s_lshl_b32", t1, sWAVE, 9), salu("s_add_u32", t0, t0, t1), salu("s_add_u32", sSLOT, t0, 4096)]
    b += [smul(t0, sB, 224), smul(t1, rho2, 112), salu("s_add_u32", t0, t0, t1), salu("s_lshl_b32", t0, t0, 12),
          salu("s_lshl_b32", t1, sBLK, 11), salu("s_add_u32", t0, t0, t1), salu("s_lshl_b32", t1, ct, 8), salu("s_add_u32", t0, t0, t1)]
    srd(b, SRD_C, KP(10), t0, 111 * 4096 + 256)
    b += [vop("v_and_b32", tmp, 1, g), vop("v_lshlrev_b32", tmp, 1, tmp), vop("v_lshrrev_b32", tmp2, 1, g), vop("v_or_b32", tmp, tmp, tmp2),
          vop("v_lshlrev_b32", tmp, 4, tmp), vop("v_lshl_add_u32", tmp, i16, 12, tmp), salu("s_lshl_b32", t0, sWAVE, 6), vop("v_add_u32", vC, t0, tmp)]
    b += [vop("v_bfe_u32", r_, lane, 2, 2), vop("v_and_b32", c_, 3, lane),
          vop("v_lshl_add_u32", tmp, g, 2, r_), vop("v_lshlrev_b32", tmp, 8, tmp), vop("v_lshl_add_u32", tmp, c_, 3, tmp), vop("v_add_u32", tmp, sMA, tmp),
          vop("v_and_b32", g, 1, g), vop("v_lshl_add_u32", g, g, 2, r_), salu("s_lshl_b32", t0, sWAVE, 1), vop("v_xor_b32", g, t0, g), vop("v_lshlrev_b32", g, 5, g)]
    for n in range(8): b += [vop("v_xor_b32", vWA2[n], n * 32, g), vop("v_add_u32", vWA2[n], tmp, vWA2[n])]
    for n in range(4): b += [salu("s_xor_b32", t0, sWAVE, n), smul(t0, t0, 40960), vop("v_add_u32", vR[n], t0, vOD[0])]
    b += [vop("v_lshlrev_b32", tmp, 7, c_), smov(sCNT, "0x200000")]
    for r in range(32, 256, 2): b.append(vop("v_mov_b64", V(r, 2), 0))
    b.append(waitvm(('W2', 0)))
    for n in range(8):
        for h in range(2): b.append(dsr("ds_read_b64_tr_b16", FA(n)[2*h:2*h+2], vWA2[n], h * 4096))
    b = p.block("poll")
    b += [label("L_poll"), vld("buffer_load_dword", tmp2, tmp, SRD_F, sSLOT, 0, "sc1"), waitall(), vop("v_cmp_ne_u32", 'vcc', sNON, tmp2),
          salu("s_sub_u32", sCNT, sCNT, 1), scmp("s_cmp_eq_u32", sCNT, 0), br("s_cbranch_scc1", "L_go"),
          Ins("s_cbranch_vccz L_go", 'br', r=[('vcc', 0)]), raw(f"s_sleep {CFG['sleep']}"), br("s_branch", "L_poll")]
    b = p.block("op_pro")
    b.append(label("L_go"))
    stamp(b, 8)
    seq = ld_o2(0, 0)
    for ks in range(1, 4):
        if ks >= CFG.get('w2pre', 2): seq += ld_w2(ks, ks)
        if ks < 3: seq += ld_o2(ks, ks)
    for c, ins in seq: b.append(ins)
    b.append(smov(sCNT, 7))

def op_step(b, s, srel, both=False):
    gaps = [[] for _ in range(56)]
    used = []
    w = waitvm(('W2', srel + 1))
    if both:
        w.need.append(('W2', srel + 2))
        for n in range(8):
            used.append(7 * n + 9 if n < 7 else 53)
            for h in range(2): gaps[used[-1]].append(dsr("ds_read_b64_tr_b16", FA31(n)[2*h:2*h+2], vWA2[n], ((s + 2) & 3) * 8192 + h * 4096))
    gaps[5].append(w)
    for n in range(8):
        for h in range(2): gaps[7 * n + 6].append(dsr("ds_read_b64_tr_b16", FA(n)[2*h:2*h+2], vWA2[n], ((s + 1) & 3) * 8192 + h * 4096))
    seq = []
    if s + 3 <= 31: seq += ld_o2(s + 3, srel + 3)
    if s + 4 <= 31:
        seq += ld_w2(s + 4, srel + 4)
        gaps[4].append(waitlgkm0())
    free = [g for g in range(7, CFG['op_hi']) if g % 7 != 6 and g not in used]
    place(gaps, seq, free, 5, 56)
    for j in range(56):
        n, qt = divmod(j, 7)
        b.append(mfma(ACC2(n, qt), FA(n), FB(s & 3, qt), ACC2(n, qt)))
        b += gaps[j]

def oproj(p):
    b = p.block("op_loop")
    b.append(label("L_op"))
    for s in range(4): op_step(b, s, s)
    b += [salu("s_sub_u32", sCNT, sCNT, 1), scmp("s_cmp_lg_u32", sCNT, 0), br("s_cbranch_scc1", "L_op")]
    b = p.block("op_tail")
    op_step(b, 28, 28); op_step(b, 29, 29, both=True)
    T = lambda m: ACC2(2 + m // 7, m % 7)
    gaps = [[] for _ in range(112)]
    gaps[4].append(waitlgkm0())
    sent, g = 0, 8
    while g < 112 and sent < 40:
        if 14 * (sent // 7) + 2 * (sent % 7) + 1 + 6 <= g:
            gaps[g].append(dsw("ds_write_b128", vR[0], T(sent), sent * 1024)); sent += 1; g += CFG.get('wsp', 3)
        else: g += 1
    for j in range(112):
        pos, r = divmod(j, 14); qt, k = divmod(r, 2); n = (2, 3, 4, 5, 6, 7, 0, 1)[pos]
        b.append(mfma(ACC2(n, qt), FA31(n) if k else FA(n), FB((30 + k) & 3, qt), ACC2(n, qt)))
        b += gaps[j]
    stamp(b, 9)
    own = [ACC2(m // 7, m % 7) for m in range(14)]
    for m in range(sent, 40): b.append(dsw("ds_write_b128", vR[0], T(m), m * 1024))
    b += [waitlgkm0(), bar()]
    def add(dst, src):
        for r in range(4): b.append(vop("v_add_f32", dst[r:r+1], dst[r:r+1], src[r:r+1]))
    for m in range(40): b.append(dsr("ds_read_b128", T(m), vR[1 + m // 14], m * 1024))
    for m in range(2): add(own[m], T(m))
    for m in range(2): b.append(dsw("ds_write_b128", vR[1], T(40 + m), m * 1024))
    for m in range(2, 40): add(own[m % 14], T(m))
    b += [waitlgkm0(), bar()]
    for m in range(2): b.append(dsr("ds_read_b128", T(40 + m), vR[2], m * 1024))
    out = [T(qt) for qt in range(7)]
    def fin(qt):
        a0, a1, o = own[qt], own[7 + qt], out[qt]
        return [vop("v_cvt_pk_bf16_f32", o[0:1], a0[0:1], a0[1:2]), vop("v_cvt_pk_bf16_f32", o[1:2], a0[2:3], a0[3:4]),
                vop("v_cvt_pk_bf16_f32", o[2:3], a1[0:1], a1[1:2]), vop("v_cvt_pk_bf16_f32", o[3:4], a1[2:3], a1[3:4])]
    def fin2(qt):
        o = out[qt]
        return [perm("v_permlane16_swap_b32", o[0:1], o[2:3]), perm("v_permlane16_swap_b32", o[1:2], o[3:4]),
                smov(sT[qt % 2], qt * 65536), vst("buffer_store_dwordx4", o, vC, SRD_C, sT[qt % 2], 0, CFG['out_flags'])]
    for qt in range(5): b += fin(qt)
    for qt in range(5): b += fin2(qt)
    for m in range(2): add(own[12 + m], T(40 + m))
    for qt in (5, 6): b += fin(qt)
    for qt in (5, 6): b += fin2(qt)
    stamp(b, 10)
    if CFG['stamps']:
        b.append(waitall())
        stamp(b, 11)
        b += [salu("s_add_u32", S(40), S(60), "0x4000000"), Ins("s_addc_u32 s41, s61, 0", 'salu', w=S(41), r=S(61)),
              smov(S(42), "0x200000"), smov(S(43), "0x20000"),
              salu("s_lshl_b32", sT[0], S(2), 2), salu("s_add_u32", sT[0], sT[0], sWAVE), salu("s_lshl_b32", sT[0], sT[0], 6)]
        if CFG['trace']:
            b += [vop("v_and_b32", V(2), 63, V(0)), vop("v_lshlrev_b32", V(2), 2, V(2)), salu("s_lshl_b32", sT[1], sT[0], 2), salu("s_add_u32", sT[1], sT[1], "0x100000"),
                  vop("v_accvgpr_read_b32", V(3), A(240)), vst("buffer_store_dword", V(3), V(2), S(40, 4), sT[1], 0)]
        if CFG.get('dbg') is not None:
            b += [salu("s_lshl_b32", sT[1], S(2), 2), salu("s_add_u32", sT[1], sT[1], sWAVE), scmp("s_cmp_lg_u32", sT[1], CFG['dbg'] * 4), br("s_cbranch_scc1", "L_end")]
            srd(b, S(44, 4), KP(11), 0, 256)
            for n in range(1, 12): b += [salu("s_sub_u32", sT[2], S(80 + n), S(80)), vop("v_mov_b32", V(7 + n), sT[2])]
            for n in range(3): b += [salu("s_sub_u32", sT[2], S(93 + n), S(92 + n)), vop("v_mov_b32", V(19 + n), sT[2])]
            b += [vop("v_mov_b32", V(22), 0), vop("v_mov_b32", V(2), 0), setexec(1)]
            for n in range(4): b.append(vst("buffer_store_dword" + ("x4" if n < 3 else "x3"), V(8 + 4 * n, 4 if n < 3 else 3), V(2), S(44, 4), 0, 4 + 16 * n))
            b.append(raw("s_endpgm"))
        for n in range(16): b += [vop("v_mov_b32", V(8 + n), S(80 + n))]
        b += [vop("v_mov_b32", V(2), 0), setexec(1)]
        for n in range(4): b.append(vst("buffer_store_dwordx4", V(8 + 4 * n, 4), V(2), S(40, 4), sT[0], 16 * n))
    b += [label("L_end"), raw("s_endpgm")]

def maxpass(p):
    b = p.block("max_pre")
    b.append(label("L_maxpass"))
    b += [smov(sPASS, 1), smov(sCNT, 32), smov(sKV, 0), bar()]
    for t in range(7): b.append(vop("v_mov_b32", vL[t], "0xff800000"))
    b = p.block("max_loop")
    b.append(label("L_maxl"))
    for pp in range(8):
        b += [salu("s_add_u32", M0, sMK, pp * 1024), dma(vKD[pp & 1], SRD_KV, sKV, 0, CFG['kv_flags']), salu("s_add_u32", sKV, sKV, sC1K)]
    b += [waitall(), bar()]
    for f in range(8): b.append(dsr("ds_read_b128", KF(f), vKA[f & 3], (f >> 2) * 4096))
    b += [waitlgkm0(), bar()]
    for t in range(7):
        s = SB(t & 1)
        for kt in range(2):
            for ds in range(4):
                d = s[4*kt:4*kt+4]
                b.append(mfma(d, KF(4 * kt + ds), QF(t, ds), 0 if ds == 0 else d))
        for n in range(0, 8, 2): b.append(vop("v_max3_f32", vL[t], vL[t], s[n:n+1], s[n+1:n+2]))
    b += [salu("s_sub_u32", sCNT, sCNT, 1), scmp("s_cmp_lg_u32", sCNT, 0), br("s_cbranch_scc1", "L_maxl")]
    b = p.block("max_post")
    lane_reduce(b, vL, [V(32 + t) for t in range(7)], "v_max_f32")
    for t in range(7):
        for r in NEGM(t): b.append(vop("v_sub_f32", [r], 0, vL[t]))
    b.append(smov(sKV, 0))
    for tile in range(4):
        for c, ins in kv_ops(tile): b.append(ins)
    for t in range(7): b.append(vop("v_mov_b32", vL[t], 0))
    if CFG['trace']: b.append(smov(sTRI, 32))
    b += [waitvm(('P', 7)), bar()]
    for f in range(8): b.append(dsr("ds_read_b128", KF(f), vKA[f & 3], (f >> 2) * 4096))
    b.append(smov(sCNT, 7))
    for G in range(-8, 0): b.append(at_mfma(G))
    b.append(br("s_branch", "L_at"))

def build(cfg=None):
    CFG.clear(); CFG.update(DEFAULT); CFG.update(cfg or {})
    p = Program()
    prologue(p); qproj(p); attention(p); check_store_handoff(p); oproj(p); maxpass(p)
    E = lambda *n: [(x, {}) for x in n]
    main = E("pro", "ep1", "pro2", "ep2", "pro3") + [("qp_loop", {'W': 4 * k, 'X': 2 * k}) for k in range(7)] + E("qp_tail", "tagspin", "tagspin", "qp_tail2", "pub", "qp_tail3")
    at = E("at_entry") + [("at_loop", {'P': CFG['ng'] * k, 'T': 32 * k}) for k in range(7)] + E("at_tail", "check")
    fb = E("max_pre", "max_loop", "max_loop", "max_post")
    st = E("store", "st_slow", "flag0") if CFG['local'] else E("store", "flag1")
    rest = E("handoff", "poll", "poll", "op_pro") + [("op_loop", {'W2': 4 * k, 'O2': 4 * k}) for k in range(7)] + E("op_tail")
    drop = lambda tr, *n: [x for x in tr if x[0] not in n]
    fast = lambda tr: [({'st_slow': 'st_fast', 'flag0': 'flag1'}.get(x[0], x[0]), x[1]) for x in tr]
    traces = []
    for body in (main + at + st + rest, main + at + fb + at + st + rest):
        for f in ((lambda t: t), fast) if CFG['local'] else ((lambda t: t),):
            for d in ((), ('ep1', 'ep2', 'pub', 'flag0', 'flag1'), ('tagspin',), ('tagspin', 'ep1', 'ep2'), ('tagspin', 'ep1', 'ep2', 'pub', 'flag0', 'flag1')):
                traces.append(drop(f(body), *d))
    for tr in traces: p.insert_waits(tr)
    n = 0
    for tr in traces: n += p.fix_hazards(tr, verbose=CFG.get('verbose'))
    return p, n
```

```python
from core import *
import atpat, struct

def f2u(x): return struct.unpack("<I", struct.pack("<f", x))[0]
RING = lambda r: r * 40960
DEFAULT = dict(kv_flags="nt", x_flags="", w_flags="", o_flags="sc1", o2_flags="sc1", w2_flags="", out_flags="sc1", early_flags="nt", pf_wo_flags="",
               stamps=False, trace=False, local=False, thr=3, thr_tail=None, pat='PAT2', ne=2, pf0=6, pfs=0, kfill=5, ng=32, sleep=1, op_hi=52, opm=True,
               wo_gaps=(29 * 112 + 52, 30 * 112 + 14), tlb=0, delay=0)
CFG = dict(DEFAULT)
M0 = 'm0'
FLAGS = 0x2000000
OOB = "0x40000000"
SRD_X, SRD_W, SRD_KV, SRD_F, SRD_O = S(4, 4), S(8, 4), S(12, 4), S(16, 4), S(20, 4)
SRD_O2, SRD_W2, SRD_C = S(4, 4), S(8, 4), S(20, 4)
sWAVE, sHH, sRHO = S(24), S(25), S(26)
sX, sW, sKV = S(27), S(28), S(29)
sO2, sW2 = S(27), S(28)
sMX, sMW, sMK, sMA = S(30), S(31), S(32), S(33)
sCNT, sPASS = S(34), S(35)
KP = lambda i: S(36 + 2 * i, 2)
sSCALE = S(62)
sC7F, sC1K = S(63), S(75)
sT = [S(64 + i) for i in range(5)]
sKH, sKO, sDH, sDO = S(69), S(70), S(71), S(76)
sNON, sXW = S(71), S(76)
sBLK, sB, sHP = S(72), S(73), S(74)
sWOP, sSLOT, sXCC, sFAST, sTRI, sPM = S(77), S(78), S(79), S(97), S(96), S(69)
vWA = [V(1 + i) for i in range(8)]
vXA = [V(9), V(10)]
vKD = [V(13), V(14)]
vTMP = [V(15), V(16)]
vXD = [V(17 + i) for i in range(7)]
vWD = [V(24 + i) for i in range(4)]
vB = [V(28), V(29), V(30), V(31)]
ACC = lambda dt, qt: V(32 + (qt * 8 + dt) * 4, 4)
QA = lambda dt: A(176 + 4 * dt, 4)
QB = lambda buf, qt: A((208 if buf == 0 else 0) + 4 * qt, 4)
QA31 = lambda dt: A(28 + 4 * dt, 4)
QB31 = lambda qt: A(236 + 4 * qt, 4) if qt < 5 else (A(60, 4) if qt == 5 else A(160, 4))
vKA = [V(1 + i) for i in range(4)]
vVA = [V(5 + i) for i in range(8)]
vL = [V(17 + i) for i in range(7)]
PB = lambda buf: V(24 + 4 * buf, 4)
SB = lambda buf: V(32 + 8 * buf, 8)
NEGM = lambda t: V(48 + 4 * t, 4)
def OT(t, dt): return V(96 + 32 * t + 4 * dt, 4) if t < 5 else A(32 * (t - 5) + 4 * dt, 4)
QF = lambda t, ds: A(64 + 16 * t + 4 * ds, 4)
KF = lambda f: A(176 + 4 * f, 4)
VF = lambda dt: A(208 + 4 * dt, 4)
vLN, vDUM, vXC, vXO = V(88), V(89), V(80), V(81)
vWA2 = [V(1 + i) for i in range(8)]
vWD2 = [V(9 + i) for i in range(8)]
vOD = [V(17), V(18)]
vR = [V(19 + i) for i in range(4)]
vC = V(23)
ACC2 = lambda n, qt: V(32 + (n * 7 + qt) * 4, 4)
FA = lambda n: A(4 * n, 4)
FA31 = lambda n: A(144 + 4 * n, 4)
FB = lambda buf, qt: A(32 + 28 * buf + 4 * qt, 4)

vop = valu
def smul(d, a, b): return salu("s_mul_i32", d, a, b, scc=False)
def csel(d, a, b): return Ins(f"s_cselect_b32 {op(d)}, {op(a)}, {op(b)}", 'salu', w=regs_of(d), r=regs_of(a, b) + [('scc', 0)])
def setexec(v): return raw(f"s_mov_b64 exec, {v}", 'salu', w=[('exec', 0)])
def srd(b, dst, ptr, off, size):
    b.append(salu("s_add_u32", [dst[0]], [ptr[0]], off))
    b.append(Ins(f"s_addc_u32 {rt([dst[1]])}, {rt([ptr[1]])}, 0", 'salu', w=[dst[1], ('scc', 0)], r=[ptr[1], ('scc', 0)]))
    b.append(smov([dst[2]], size)); b.append(smov([dst[3]], "0x20000"))
def stamp(b, n):
    if CFG['stamps']:
        b += [raw("s_memrealtime s[100:101]"), waitlgkm0(), smov(S(80 + n), S(100))]
        if n in CFG.get('cyc', ()): b += [raw("s_memtime s[98:99]"), waitlgkm0(), smov(S(92 + CFG['cyc'].index(n)), S(98))]
def thr(n): return Ins(f"s_waitcnt vmcnt({n})", 'thr', tag=n)
def touch(dst, voff, srd_, soff, fl=""):
    i = vld("buffer_load_dword", dst, voff, srd_, soff, 0, fl); i.w = []
    return i
def place(gaps, seq, free, lo, hi):
    ng = sum(c == 'G' for c, _ in seq)
    gpos = [free[(n * len(free)) // ng] for n in range(ng)] if ng else []
    assert len(set(gpos)) == ng, (ng, len(free))
    n = 0
    for c, ins in seq:
        if c == 'G': gaps[gpos[n]].append(ins); n += 1
        elif c == 'T': gaps[gpos[n]].append(ins)
        else:
            prev = gpos[n - 1] if n else lo
            nxt = gpos[n] if n < ng else hi
            if prev + 1 < nxt:
                gg = gaps[nxt - 1 if nxt < hi else prev + 1]
                k = 0
                while k < len(gg) and gg[k].kind in ('salu', 'waitvm', 'waitlgkm0', 'bar'): k += 1
                gg.insert(k, ins)
            else: gaps[prev].append(ins)

def prologue(p):
    b = p.block("pro")
    b += [scmp("s_cmp_ge_u32", S(2), 256), br("s_cbranch_scc1", "L_end")]
    stamp(b, 0)
    b += [raw("s_load_dwordx16 s[36:51], s[0:1], 0", w=S(36, 16)), raw("s_load_dwordx8 s[52:59], s[0:1], 64", w=S(52, 8)),
          raw("s_load_dwordx2 s[60:61], s[0:1], 96", w=S(60, 2))]
    lane, i16, g, r_, c_ = V(28), V(29), V(30), V(31), V(11)
    tmp, tmp2 = V(12), V(1)
    b += [vop("v_lshrrev_b32", tmp, 6, V(0)), vop("v_and_b32", lane, 63, V(0)), vop("v_readfirstlane_b32", sWAVE, tmp),
          vop("v_and_b32", i16, 15, lane), vop("v_lshrrev_b32", g, 4, lane)]
    b += [salu("s_lshr_b32", sHH, sWAVE, 1), salu("s_and_b32", sRHO, sWAVE, 1)]
    j_, t0, t1, t2, t3 = sT
    b += [salu("s_and_b32", t0, S(2), 7), salu("s_lshr_b32", j_, S(2), 3), salu("s_lshr_b32", sBLK, t0, 2)]
    if CFG['local']:
        b += [salu("s_and_b32", sB, t0, 3), salu("s_lshl_b32", sB, sB, 1), salu("s_and_b32", t1, j_, 1), salu("s_add_u32", sB, sB, t1), salu("s_lshr_b32", sHP, j_, 1)]
    else:
        b += [salu("s_and_b32", sB, t0, 1), salu("s_lshl_b32", sB, sB, 2), salu("s_and_b32", t1, j_, 3), salu("s_add_u32", sB, sB, t1),
              salu("s_bfe_u32", sHP, t0, "0x10001"), salu("s_lshl_b32", sHP, sHP, 3), salu("s_lshr_b32", t1, j_, 2), salu("s_add_u32", sHP, sHP, t1)]
    b += [salu("s_lshl_b32", sSLOT, sBLK, 3), salu("s_add_u32", sSLOT, sSLOT, sB), salu("s_lshl_b32", sSLOT, sSLOT, 4), salu("s_add_u32", sSLOT, sSLOT, sHP)]
    b += [salu("s_lshl_b32", sWOP, j_, 2), salu("s_and_b32", t1, S(2), 3), salu("s_add_u32", sWOP, sWOP, t1), salu("s_lshl_b32", sWOP, sWOP, 2),
          salu("s_add_u32", sWOP, sWOP, sWAVE), salu("s_lshl_b32", sWOP, sWOP, 14)]
    b += [smul(t0, sHH, 40960), salu("s_lshl_b32", t1, sRHO, 12), salu("s_add_u32", sMW, t0, t1), salu("s_add_u32", sMW, sMW, RING(2) + 8192),
          smul(t2, sRHO, 7168), salu("s_add_u32", sMX, t0, t2), salu("s_add_u32", sMX, sMX, 8192),
          smul(t2, sRHO, RING(2)), salu("s_add_u32", sMK, t0, t2), smul(sMA, sWAVE, 40960)]
    b += [salu("s_lshl_b32", t3, sRHO, 4), vop("v_add_u32", tmp, t3, g), vop("v_lshlrev_b32", tmp, 13, tmp),
          salu("s_lshl_b32", t3, sHH, 8), vop("v_add_u32", tmp, t3, tmp),
          vop("v_lshlrev_b32", tmp2, 1, g), vop("v_xor_b32", tmp2, tmp2, i16), vop("v_lshlrev_b32", V(2), 4, tmp2), vop("v_xor_b32", V(3), 128, V(2))]
    for pp in range(4):
        b += [vop("v_add_u32", vWD[pp], tmp, V(2) if pp < 2 else V(3)), vop("v_add_u32", vWD[pp], pp * 32768 - pp * 1024, vWD[pp])]
    b += [vop("v_lshrrev_b32", tmp, 3, lane), smul(t2, sHH, 112), smul(t3, sRHO, 56), salu("s_add_u32", t2, t2, t3),
          vop("v_add_u32", tmp, t2, tmp), vop("v_lshlrev_b32", tmp, 11, tmp),
          vop("v_and_b32", tmp2, 7, lane), vop("v_xor_b32", tmp2, tmp2, g), salu("s_lshl_b32", t3, sRHO, 2),
          vop("v_xor_b32", tmp2, t3, tmp2), vop("v_lshlrev_b32", V(2), 4, tmp2), vop("v_xor_b32", V(3), 64, V(2))]
    for pp in range(7):
        b += [vop("v_add_u32", vXD[pp], tmp, V(2) if pp % 2 == 0 else V(3)), vop("v_add_u32", vXD[pp], pp * 16384 - (pp & 3) * 1024, vXD[pp])]
    b += [smov(sX, 0), smov(sW, 0), vop("v_mov_b32", vTMP[0], 0), waitlgkm0()]
    b.append(scmp("s_cmp_eq_u32", sBLK, 0))
    for i in (3, 0, 1, 2, 4):
        for hl in range(2): b.append(csel(S(36 + 2 * i + hl), S(36 + 2 * i + hl), S(46 + 2 * i + hl)))
    b += [salu("s_lshl_b32", t0, sHP, 9), salu("s_sub_u32", t2, 8388608, t0)]; srd(b, SRD_W, KP(3), t0, t2)
    b += [smul(t0, sB, 458752)]; srd(b, SRD_X, KP(0), t0, 458752)
    def ldx(pair):
        for pp in range(7):
            if pp % 4 == 0: b.append(salu("s_add_u32", M0, sMX, (pair & 1) * 18432 + (pp >> 2) * 4096))
            b.append(dma(vXD[pp], SRD_X, sX, (pp & 3) * 1024, CFG['x_flags'], tag=('X', pair)))
        b.append(salu("s_add_u32", sX, sX, 128))
    def ldw(ks):
        b.append(salu("s_add_u32", M0, sMW, (ks & 3) * 8192))
        for pp in range(4): b.append(dma(vWD[pp], SRD_W, sW, pp * 1024, CFG['w_flags'], tag=('W', ks)))
        b.append(salu("s_add_u32", sW, sW, 262144))
    ldw(0); ldx(0)
    srd(b, SRD_F, KP(12), FLAGS, 4096 + 256 * 128)
    b += [salu("s_or_b32", t0, sSLOT, sWAVE), scmp("s_cmp_lg_u32", t0, 0), br("s_cbranch_scc1", "L_ep1")]
    b = p.block("ep1")
    b.append(vld("buffer_load_dword", vTMP[1], vTMP[0], SRD_F, 0, 0, "sc1"))
    b = p.block("pro2")
    b.append(label("L_ep1"))
    ldw(1); ldx(1); ldw(2); ldw(3)
    b += [vop("v_and_b32", tmp2, 2, g), vop("v_lshlrev_b32", tmp2, 1, tmp2), vop("v_and_b32", V(2), 1, g), vop("v_or_b32", tmp2, tmp2, V(2)),
          vop("v_lshlrev_b32", V(2), 1, g), scmp("s_cmp_eq_u32", sRHO, 0), Ins("s_cselect_b64 vcc, -1, 0", 'salu', w=[('vcc', 0)], r=[('scc', 0)]),
          vop("v_cndmask_b32", tmp2, V(2), tmp2, 'vcc'), vop("v_xor_b32", tmp2, tmp2, i16), vop("v_lshlrev_b32", tmp2, 4, tmp2),
          vop("v_lshl_add_u32", vKD[0], g, 8, tmp2), vop("v_xor_b32", vKD[1], 128, vKD[0])]
    for hl in range(2): b.append(csel(S(38 + hl), S(38 + hl), S(40 + hl)))
    b += [salu("s_lshl_b32", t0, sB, 5), salu("s_lshl_b32", t2, sHP, 1), salu("s_add_u32", t0, t0, t2), salu("s_add_u32", t0, t0, sHH), salu("s_lshl_b32", t0, t0, 18)]
    srd(b, SRD_KV, KP(1), t0, 262144)
    b += [salu("s_lshr_b32", t0, sSLOT, 4), salu("s_lshl_b32", t0, t0, 1), salu("s_add_u32", t0, t0, sRHO), salu("s_lshl_b32", t0, t0, 5),
          salu("s_lshl_b32", t2, sHP, 1), salu("s_add_u32", t0, t0, t2), salu("s_add_u32", t0, t0, sHH), smul(t0, t0, 28672)]
    srd(b, SRD_O, KP(12), t0, 28672)
    b += [Ins("s_getreg_b32 s79, hwreg(HW_REG_XCC_ID, 0, 4)", 'salu', w=sXCC), smov(sPASS, 0), smov(sSCALE, hex(f2u(1.4426950408889634 / 128 ** 0.5))),
          smov(sC7F, "0x7fff"), smov(sC1K, 1024)]
    if CFG['tlb']:
        T4, pg = S(64, 4), V(35)
        b += [vop("v_lshlrev_b32", pg, 20, lane), touch(A(255), pg, SRD_KV, 0), touch(A(255), pg, SRD_W, 0), touch(A(255), pg, SRD_F, sC1K, 'sc1')]
        srd(b, T4, KP(4), 0, 8388608); b.append(touch(A(255), pg, T4, 0))
        b += [salu("s_lshr_b32", t3, sSLOT, 4), smul(t3, t3, 1835008)]; srd(b, T4, KP(12), t3, 1835008); b.append(touch(A(255), pg, T4, 0, 'sc1'))
        b += [smov(t3, 1835004), touch(A(255), vTMP[0], T4, t3, 'sc1')]
        b += [smul(t3, sB, 917504)]; srd(b, T4, KP(10), t3, 917504); b.append(touch(A(255), pg, T4, 0))
        b += [smov(t3, 917500), touch(A(255), vTMP[0], T4, t3)]
        srd(b, T4, KP(11), 0, 256); b += [smov(t3, 128), touch(A(255), vTMP[0], T4, t3, 'sc1')]
    b += [vop("v_lshrrev_b32", tmp, 1, i16), vop("v_xor_b32", tmp, tmp, g), vop("v_lshlrev_b32", tmp, 4, tmp), vop("v_lshlrev_b32", tmp2, 7, i16),
          smul(t0, sRHO, 40960), salu("s_add_u32", t0, t0, 8192),
          vop("v_add_u32", tmp2, t0, tmp2), vop("v_add_u32", vXA[0], tmp2, tmp), vop("v_xor_b32", tmp, 64, tmp), vop("v_add_u32", vXA[1], tmp2, tmp)]
    a_, b_ = V(33), V(34)
    b += [vop("v_bfe_u32", r_, lane, 2, 2), vop("v_and_b32", c_, 3, lane), smul(t0, sHH, 40960), salu("s_add_u32", t1, t0, RING(2) + 8192),
          vop("v_lshl_add_u32", tmp, g, 3, r_), vop("v_lshlrev_b32", tmp, 8, tmp), vop("v_lshl_add_u32", tmp, c_, 3, tmp), vop("v_add_u32", tmp, t1, tmp),
          vop("v_and_b32", a_, 1, g), vop("v_lshl_add_u32", a_, a_, 2, r_), vop("v_lshlrev_b32", a_, 5, a_)]
    for dt in range(8): b += [vop("v_xor_b32", vWA[dt], dt * 32, a_), vop("v_add_u32", vWA[dt], tmp, vWA[dt])]
    b += [vop("v_lshl_add_u32", a_, g, 2, r_), vop("v_lshlrev_b32", a_, 8, a_), vop("v_lshl_add_u32", a_, c_, 3, a_), salu("s_add_u32", t1, t0, RING(2)),
          vop("v_add_u32", vB[3], t1, a_),
          vop("v_and_b32", a_, 1, g), vop("v_lshlrev_b32", a_, 1, a_), vop("v_lshrrev_b32", b_, 1, g), vop("v_or_b32", a_, a_, b_),
          vop("v_and_b32", b_, 1, i16), vop("v_xor_b32", a_, a_, b_), vop("v_and_b32", b_, 6, i16), vop("v_lshlrev_b32", b_, 1, b_), vop("v_xor_b32", a_, a_, b_),
          vop("v_lshlrev_b32", vB[0], 4, a_), vop("v_lshlrev_b32", b_, 8, i16), vop("v_add_u32", vB[1], t0, b_)]
    for r in range(32, 256, 2): b.append(vop("v_mov_b64", V(r, 2), 0))
    b += [smov(sCNT, 7), smov(sKH, 0), smov(sDH, 0), smov(sKO, CFG['pf0'] * 8192 if CFG['pfs'] else OOB), smov(sDO, CFG['pfs'] * 8192),
          salu("s_or_b32", t0, sSLOT, sWAVE), scmp("s_cmp_lg_u32", t0, 0), br("s_cbranch_scc1", "L_ep2")]
    b = p.block("ep2")
    srd(b, S(64, 4), KP(11), 0, 256)
    b += [vop("v_add_u32", vTMP[1], 1, vTMP[1]), vop("v_max_u32", vTMP[1], 1, vTMP[1]), setexec(1),
          vst("buffer_store_dword", vTMP[1], vTMP[0], SRD_F, 0, 0, "sc1"), vst("buffer_store_dword", vTMP[1], vTMP[0], S(64, 4), 0, 0, "sc1"), setexec(-1)]
    b = p.block("pro3")
    b.append(label("L_ep2"))
    if CFG.get('dbgq') is not None: b += [smov(sTRI, 2), vop("v_and_b32", V(16), 63, V(0)), vop("v_mov_b32", V(11), S(80))]
    b += [waitvm(('X', 0), ('W', 0)), bar()]
    for qt in range(7): b.append(dsr("ds_read_b128", QB(0, qt), vXA[0], qt * 2048))
    for dt in range(8):
        for h in range(2): b.append(dsr("ds_read_b64_tr_b16", QA(dt)[2*h:2*h+2], vWA[dt], h * 1024))
    stamp(b, 1)

def kv_ops(tile, thr_=None):
    o = []
    for pp in range(8):
        o += [('S', salu("s_and_b32", sPM, sKV, sC7F)), ('S', salu("s_add_u32", M0, sMK, sPM))]
        if thr_ is not None: o.append(('T', thr(thr_)))
        o += [('G', dma(vKD[pp & 1], SRD_KV, sKV, 0, CFG['kv_flags'], tag=('P', 8 * tile + pp))), ('S', salu("s_add_u32", sKV, sKV, sC1K))]
    return o

A_GAPS = [7 * dt + 6 for dt in range(8)]
D_GAPS = [8, 15, 22, 29, 36, 43, 50]
def qp_step(b, s, srel, kv=None, extra=(), early=None, both=False):
    gaps = [[] for _ in range(56)]
    used = []
    w = waitvm(('W', srel + 1))
    if (s + 1) % 2 == 0: w.need.append(('X', (srel + 1) // 2))
    if both:
        w.need.append(('W', srel + 2))
        for dt, g in enumerate((9, 16, 23, 30, 37, 44, 51, 53)):
            used.append(g)
            for h in range(2): gaps[g].append(dsr("ds_read_b64_tr_b16", QA31(dt)[2*h:2*h+2], vWA[dt], ((s + 2) & 3) * 8192 + h * 1024))
        for qt, g in enumerate((11, 18, 25, 32, 39, 46, 52)):
            used.append(g)
            gaps[g].append(dsr("ds_read_b128", QB31(qt), vXA[1], 18432 + qt * 2048))
    gaps[5] += [w, waitlgkm0()]
    gaps[6].append(bar())
    if CFG.get('dbgq') is not None and s < 28 and s % 2 == 1:
        gaps[7].append(raw("s_memrealtime s[100:101]"))
        gaps[40] += [waitlgkm0(), vop("v_cmp_eq_u32", 'vcc', sTRI, V(16)), vop("v_mov_b32", V(12), S(100)), salu("s_add_u32", sTRI, sTRI, 1), vop("v_cndmask_b32", V(11), V(11), V(12), 'vcc')]
    for dt in range(8):
        for h in range(2): gaps[A_GAPS[dt]].append(dsr("ds_read_b64_tr_b16", QA(dt)[2*h:2*h+2], vWA[dt], ((s + 1) & 3) * 8192 + h * 1024))
    pair, par = (s + 1) >> 1, (s + 1) & 1
    for qt, g in enumerate(D_GAPS):
        gaps[g].append(dsr("ds_read_b128", QB((s + 1) & 1, qt), vXA[par], (pair & 1) * 18432 + qt * 2048))
    seq = []
    if early is not None:
        for n in range(early):
            seq += [('S', salu("s_add_u32", M0, sMK, sKH)), ('G', dma(vKD[n & 1], SRD_KV, sKO, 0, CFG['early_flags'], tag=('P', 7))),
                    ('S', salu("s_add_u32", sKH, sKH, sDH)), ('S', salu("s_add_u32", sKO, sKO, sDO))]
    if s % 2 == 1 and (s + 3) // 2 <= 15:
        pair = (s + 3) // 2
        for pp in range(7):
            if pp % 4 == 0: seq.append(('S', salu("s_add_u32", M0, sMX, (pair & 1) * 18432 + (pp >> 2) * 4096)))
            seq.append(('G', dma(vXD[pp], SRD_X, sX, (pp & 3) * 1024, CFG['x_flags'], tag=('X', (srel + 3) // 2))))
        seq.append(('S', salu("s_add_u32", sX, sX, 128)))
    if s + 4 <= 31:
        seq.append(('S', salu("s_add_u32", M0, sMW, (s & 3) * 8192)))
        for pp in range(4): seq.append(('G', dma(vWD[pp], SRD_W, sW, pp * 1024, CFG['w_flags'], tag=('W', srel + 4))))
        seq.append(('S', salu("s_add_u32", sW, sW, 262144)))
    if kv is not None: seq += kv_ops(kv, CFG['thr_tail'])
    free = [g for g in range(9, 55) if g not in A_GAPS and g not in D_GAPS and g not in used]
    place(gaps, seq, free, 7, 56)
    for g, ins in extra: gaps[g].append(ins)
    for j in range(56):
        dt, qt = divmod(j, 7)
        b.append(mfma(ACC(dt, qt), QA(dt), QB(s & 1, qt), ACC(dt, qt)))
        b += gaps[j]

def conv_ops(qt):
    st = []
    for ds in range(4):
        t0, t1 = ACC(2 * ds, qt), ACC(2 * ds + 1, qt)
        q = QF(qt, ds)
        st.append(([vop("v_mul_f32", [r], sSCALE, [r]) for r in t0 + t1],
                   [vop("v_cvt_pk_bf16_f32", t[n:n+1], t[2*n:2*n+1], t[2*n+1:2*n+2]) for t in (t0, t1) for n in range(2)],
                   [perm("v_permlane16_swap_b32", t0[0:1], t1[0:1]), perm("v_permlane16_swap_b32", t0[1:2], t1[1:2])],
                   [vop("v_accvgpr_write_b32", q[n:n+1], src) for n, src in enumerate((t0[0:1], t0[1:2], t1[0:1], t1[1:2]))]))
    o = []
    for u, k in ((0,0),(1,0),(0,1),(2,0),(1,1),(0,2),(3,0),(2,1),(1,2),(0,3),(3,1),(2,2),(1,3),(3,2),(2,3),(3,3)):
        o += [(16 * qt + 4 * u + 5, i) for i in st[u][k]]
    return o

def qproj(p):
    b = p.block("qp_loop")
    b.append(label("L_qp"))
    for s in range(4): qp_step(b, s, s, early=CFG['ne'] if s % 2 == 0 else None)
    nreal = 8 // (2 * CFG['ne'])
    b += [scmp("s_cmp_eq_u32", sCNT, nreal + 1), csel(sKO, 0, sKO), csel(sDO, 1024, sDO), csel(sDH, 1024, sDH),
          salu("s_sub_u32", sCNT, sCNT, 1), scmp("s_cmp_lg_u32", sCNT, 0), br("s_cbranch_scc1", "L_qp")]
    b = p.block("qp_tail")
    if CFG.get('dbgq') is not None:
        srd(b, S(64, 4), KP(11), 0, 64)
        b += [vop("v_cmp_eq_u32", 'vcc', 1, V(16)), vop("v_mov_b32", V(12), S(81)), nop(1), vop("v_cndmask_b32", V(11), V(11), V(12), 'vcc'), vop("v_subrev_u32", V(11), S(80), V(11)),
              vop("v_lshlrev_b32", V(12), 2, V(16)), salu("s_lshl_b32", sT[4], S(2), 2), salu("s_add_u32", sT[4], sT[4], sWAVE),
              scmp("s_cmp_eq_u32", sT[4], CFG['dbgq'] * 4), csel(sT[4], 0, OOB), raw("s_mov_b64 exec, 0xfffe", 'salu', w=[('exec', 0)]),
              vst("buffer_store_dword", V(11), V(12), S(64, 4), sT[4], 0), setexec(-1)]
    srd(b, S(64, 4), KP(11), 0, 256)
    b += [smov(sKV, 8192), vld("buffer_load_dword", vTMP[1], vTMP[0], S(64, 4), 0, 0, "sc1")]
    qp_step(b, 28, 28)
    b += [vop("v_readfirstlane_b32", sNON, vTMP[1]), smov(sCNT, "0x200000"), scmp("s_cmp_lg_u32", sNON, 0), br("s_cbranch_scc1", "L_tag")]
    b = p.block("tagspin")
    b += [label("L_tagspin"), raw("s_sleep 4"), vld("buffer_load_dword", vTMP[1], vTMP[0], S(64, 4), 0, 0, "sc1"), waitall(), vop("v_readfirstlane_b32", sNON, vTMP[1]),
          salu("s_sub_u32", sCNT, sCNT, 1), scmp("s_cmp_eq_u32", sCNT, 0), br("s_cbranch_scc1", "L_tag"),
          scmp("s_cmp_eq_u32", sNON, 0), br("s_cbranch_scc1", "L_tagspin")]
    b = p.block("qp_tail2")
    b.append(label("L_tag"))
    b += [salu("s_add_u32", sXW, sXCC, 1), salu("s_lshl_b32", sXW, sXW, 24), salu("s_add_u32", sXW, sXW, sNON),
          salu("s_lshl_b32", sSLOT, sSLOT, 7), salu("s_add_u32", sSLOT, sSLOT, 4096), vop("v_mov_b32", vTMP[1], sXW),
          scmp("s_cmp_lg_u32", sWAVE, 0), br("s_cbranch_scc1", "L_nopub")]
    b = p.block("pub")
    b += [setexec(1), vst("buffer_store_dword", vTMP[1], vTMP[0], SRD_F, sSLOT, 4, "sc1"), setexec(-1)]
    b = p.block("qp_tail3")
    b.append(label("L_nopub"))
    qp_step(b, 29, 29, kv=1, both=True)
    gaps = [[] for _ in range(112)]
    gaps[5] += [waitvm(('P', 7)), waitlgkm0()]; gaps[6].append(bar())
    place(gaps, kv_ops(2, CFG['thr_tail']) + kv_ops(3, CFG['thr_tail']), list(range(9, 92)), 7, 112)
    for f in range(8): gaps[96 + 2 * f + 1].append(dsr("ds_read_b128", KF(f), vKA[f & 3], (f >> 2) * 4096))
    q = []
    for ds in range(4): q += [(0, vop("v_xor_b32", vKA[ds], ds * 64, vB[0])), (0, vop("v_add_u32", vKA[ds], vB[1], vKA[ds]))]
    q += [(0, vop("v_lshrrev_b32", vB[0], 4, V(0))), (0, vop("v_and_b32", vB[0], 1, vB[0])), (0, vop("v_bfe_u32", vB[1], V(0), 2, 2)),
          (0, vop("v_lshl_add_u32", vB[0], vB[0], 2, vB[1])), (0, vop("v_lshlrev_b32", vB[0], 5, vB[0]))]
    for dt in range(8): q += [(0, vop("v_xor_b32", vVA[dt], dt * 32, vB[0])), (0, vop("v_add_u32", vVA[dt], vB[3], vVA[dt]))]
    for t in range(7): q.append((0, vop("v_mov_b32", vL[t], 0)))
    for qt in range(7):
        q += conv_ops(qt)
        if qt == 1:
            for t in range(7):
                for n in (0, 2): q.append((0, vop("v_mov_b64", NEGM(t)[n:n+2], 0)))
            q += [(0, vop("v_and_b32", vLN, 63, V(0))), (0, vop("v_and_b32", vXO, 15, V(0))), (0, vop("v_lshlrev_b32", vLN, 7, vLN)), (0, vop("v_lshlrev_b32", vXO, 7, vXO))]
    sc = []
    srd(sc, SRD_X, KP(4), 0, 8388608)
    for n, ins in enumerate(sc): gaps[1 + n // 2].append(ins)
    g = 1
    while q and g < 112:
        room = CFG['kfill'] - 2 * sum(i.kind in VM for i in gaps[g]) - sum(i.kind in LG for i in gaps[g])
        while q and room > 0 and q[0][0] <= g:
            gaps[g].append(q.pop(0)[1]); room -= 1
        g += 1
    for j in range(112):
        qt, r = divmod(j, 16); dt, k = divmod(r, 2)
        b.append(mfma(ACC(dt, qt), QA31(dt) if k else QA(dt), QB31(qt) if k else QB(0, qt), ACC(dt, qt)))
        b += gaps[j]
    if CFG['trace']: b += [smov(sTRI, 32), vop("v_mov_b32", V(95), 0), vop("v_and_b32", V(94), 63, V(0))]
    stamp(b, 2)
    if CFG['ng'] != 32 or True: b.append(smov(sCNT, 7))
    stamp(b, 3)
    rest = [i for _, i in q]
    per = (len(rest) + 7) // 8
    for G in range(-8, 0):
        b.append(at_mfma(G))
        b += rest[:per]; rest = rest[per:]

def at_ins(key, i):
    k = key[0]
    if not 0 <= i <= 31: return None
    if k in 'ECA':
        t = int(key[1]); j = int(key[2]); n = 7 * i + t
        s = SB(n & 1)
        if k == 'E': return [trans("v_exp_f32", s[j:j+1], s[j:j+1])]
        if k == 'A': return [vop("v_add_f32", vL[t], vL[t], s[j:j+1])]
        return [vop("v_cvt_pk_bf16_f32", PB(n & 1)[j:j+1], s[2*j:2*j+1], s[2*j+1:2*j+2])]
    if k == 'V':
        dt, h = int(key[1]), int(key[2])
        o = [dsr("ds_read_b64_tr_b16", VF(dt)[2*h:2*h+2], vVA[dt], (i & 3) * 8192 + h * 4096)]
        if CFG['trace'] and key == 'V00' and i > 0:
            o += [vop("v_cmp_eq_u32", 'vcc', sTRI, V(94)), vop("v_mov_b32", V(93), S(100)), salu("s_add_u32", sTRI, sTRI, 1), vop("v_cndmask_b32", V(95), V(95), V(93), 'vcc')]
        return o
    if i + 1 > 31: return None
    if k == 'K':
        f = int(key[1])
        return [dsr("ds_read_b128", KF(f), vKA[f & 3], ((i + 1) & 3) * 8192 + (f >> 2) * 4096)]
    if k == 'W': return [waitvm(('P', 8 * i + 15, 'T'))]
    if k == 'B': return [bar()] + ([raw("s_memrealtime s[100:101]")] if CFG['trace'] else [])
    raise KeyError(key)

def at_mfma(G):
    n, j = divmod(G, 16)
    if j < 8:
        m = n - 1
        if not 0 <= m < 224: return None
        i, t = divmod(m, 7)
        return mfma(OT(t, j), VF(j), PB(m & 1), 0 if i == 0 else OT(t, j))
    m = n + 1
    if not 0 <= m < 224: return None
    i, t = divmod(m, 7)
    kt, ds = divmod(j - 8, 4)
    d = SB(m & 1)[4*kt:4*kt+4]
    return mfma(d, KF(j - 8), QF(t, ds), NEGM(t) if ds == 0 else d)

def at_range(b, g0, g1, pat, gsel, piece):
    pre = {}
    for G in gsel:
        pre.setdefault(G - 2, []).append(salu("s_and_b32", sPM, sKV, sC7F)); pre.setdefault(G - 1, []).append(salu("s_add_u32", M0, sMK, sPM))
        pre.setdefault(G + (2 if G % 112 == 79 else 1), []).insert(0, salu("s_add_u32", sKV, sKV, sC1K))
    for G in range(g0, g1):
        m = at_mfma(G)
        if m is not None: b.append(m)
        b += pre.pop(G, [])
        i, rel = divmod(G, atpat.STEP)
        if G in CFG['wo_gaps']: b += [touch(vDUM, vLN, SRD_X, sWOP, CFG['pf_wo_flags']), salu("s_add_u32", sWOP, sWOP, 8192)]
        if G == 30 * 112 + 52 and CFG['local']:
            b += [salu("s_sub_u32", sT[0], sSLOT, 4096), salu("s_and_b32", sT[0], sT[0], "0xfffff800"), salu("s_add_u32", sT[0], sT[0], 4096),
                  vld("buffer_load_dword", vXC, vXO, SRD_F, sT[0], 4, "sc1")]
        if G in gsel:
            th = CFG['thr']
            if isinstance(th, (tuple, list)): th = th[piece % len(th)]
            if th is not None: b.append(thr(th))
            b.append(dma(vKD[(piece - CFG['_par0']) & 1], SRD_KV, sKV, 0, CFG['kv_flags'], tag=('P', piece))); piece += 1
        for key, d in pat[rel]:
            if key[0] in 'GMUY': continue
            ins = at_ins(key, i + d)
            if ins is not None: b += ins
    assert not pre, pre.keys()
    return piece

def attention(p):
    pat, pos, over = atpat.parse(getattr(atpat, CFG['pat']))
    gp = sorted(v % 112 for k, v in pos.items() if k[0] == 'G')
    NG = CFG['ng']
    CFG['_par0'] = 0
    ent = [g for g in gp if g > 80]
    body = [112 * i + g for i in range(1, 6) for g in gp if 120 <= 112 * i + g < 568]
    assert len(body) == 32
    drop = {32: [], 31: [112 * 2 + 27], 30: [112 * 2 + 27, 112 * 4 + 27]}[NG]
    body = [g for g in body if g not in drop]
    D = CFG['delay']
    n_tail = 256 - 32 + D - len(ent) - 7 * NG
    tail = [112 * i + g for i in range(29, 31) for g in gp if 112 * i + g >= 3256][:max(0, n_tail)]
    allg = ent + [g + 448 * k for k in range(7) for g in body] + tail
    lead = 10 ** 9
    for n, G in enumerate(allg):
        tile = (32 - D + n) // 8
        assert G > 112 * (tile - 4) + 80, (n, G)
        if tile <= 31: lead = min(lead, 112 * (tile - 1) + 79 - G)
    CFG['_lead'] = lead
    b = p.block("at_entry")
    b.append(label("L_at"))
    if D: b.append(smov(sKV, 32768 - D * 1024))
    pc = at_range(b, 0, 120, pat, set(ent), 32 - D)
    b = p.block("at_loop")
    b.append(label("L_atl"))
    at_range(b, 120, 568, pat, set(body), pc)
    if NG % 2: b.append(Ins("v_swap_b32 v13, v14", 'valu', w=V(13, 2), r=V(13, 2)))
    b += [salu("s_sub_u32", sCNT, sCNT, 1), scmp("s_cmp_lg_u32", sCNT, 0), br("s_cbranch_scc1", "L_atl")]
    b = p.block("at_tail")
    CFG['_par0'] = (7 * NG) & 1
    at_range(b, 3256, 32 * 112 + 8, pat, set(tail), pc + 7 * NG)
    if (7 * NG) & 1: b.append(Ins("v_swap_b32 v13, v14", 'valu', w=V(13, 2), r=V(13, 2)))
    stamp(b, 4)
    if CFG['trace']: b += [vop("v_accvgpr_write_b32", A(240), V(95))]

def lane_reduce(b, regs, tmps, opname):
    for sw in ("v_permlane16_swap_b32", "v_permlane32_swap_b32"):
        for r, t in zip(regs, tmps): b.append(vop("v_mov_b32", t, r))
        for r, t in zip(regs, tmps): b.append(perm(sw, r, t))
        for r, t in zip(regs, tmps): b.append(vop(opname, r, r, t))

def ld_o2(ks, tag):
    o = [('G', vld("buffer_load_dwordx4", FB(ks & 3, qt), vOD[qt >> 2], SRD_O2, sO2, (qt & 3) * 1024, CFG['o2_flags'], tag=('O2', tag))) for qt in range(7)]
    return o + [('S', salu("s_add_u32", sO2, sO2, 7168))]
def ld_w2(ks, tag):
    o = []
    for pc in range(8):
        if pc % 4 == 0: o.append(('S', salu("s_add_u32", M0, sMA, (ks & 3) * 8192 + (pc >> 2) * 4096)))
        o.append(('G', dma(vWD2[pc], SRD_W2, sW2, (pc & 3) * 1024, CFG['w2_flags'], tag=('W2', tag))))
    return o + [('S', salu("s_add_u32", sW2, sW2, 65536))]

def check_store_handoff(p):
    b = p.block("check")
    tm = [V(32 + 2 * t) for t in range(7)]
    if CFG['local']:
        b += [vop("v_cmp_ne_u32", 'vcc', sXW, vXC), nop(1), salu("s_or_b32", sFAST, 'vcc_lo', 'vcc_hi')]
    lane_reduce(b, vL, tm, "v_add_f32")
    lo, hi, bad = sT[0], sT[1], S(66, 2)
    b += [smov(lo, hex(f2u(2.0 ** -32))), smov(hi, hex(f2u(2.0 ** 32))), raw("s_mov_b64 s[66:67], 0", 'salu', w=bad)]
    for t in range(7):
        b += [vop("v_cmp_nle_f32", 'vcc', lo, vL[t]), vop("v_cmp_nge_f32", S(98, 2), hi, vL[t]), trans("v_rcp_f32", tm[t], vL[t]),
              raw("s_or_b64 s[66:67], s[66:67], vcc", 'salu', w=bad + [('scc', 0)], r=bad + [('vcc', 0)]),
              raw("s_or_b64 s[66:67], s[66:67], s[98:99]", 'salu', w=bad + [('scc', 0)], r=bad + S(98, 2))]
    b += [salu("s_or_b32", sT[0], S(66), S(67)), salu("s_lshl_b32", sT[1], sWAVE, 2), salu("s_add_u32", sT[1], sT[1], RING(0) + 32768),
          vop("v_mov_b32", V(48), sT[1]), vop("v_mov_b32", V(49), sT[0]), vop("v_mov_b32", V(50), RING(0) + 32768),
          dsw("ds_write_b32", V(48), V(49), 0), waitlgkm0(), bar(), dsr("ds_read_b128", V(52, 4), V(50), 0),
          vop("v_and_b32", V(24), 63, V(0)), vop("v_lshlrev_b32", vOD[0], 4, V(24)), vop("v_add_u32", vOD[1], 4096, vOD[0]),
          vop("v_or_b32", V(52), V(52), V(53)), vop("v_or3_b32", V(52), V(52), V(54), V(55)), vop("v_readfirstlane_b32", sT[0], V(52)),
          scmp("s_cmp_eq_u32", sT[0], 0), br("s_cbranch_scc1", "L_store"),
          scmp("s_cmp_eq_u32", sPASS, 0), br("s_cbranch_scc1", "L_maxpass")]
    b = p.block("store")
    b.append(label("L_store"))
    stamp(b, 5)
    lane, i16, g, r_, c_, tmp, tmp2 = V(24), V(25), V(26), V(27), V(28), V(29), V(30)
    def stores(b, flags):
        for t in (5, 0, 6, 1, 2, 3, 4):
            rc = V(32 + 2 * t, 2)
            if t < 5: R = V(96 + 32 * t, 32)
            else:
                R = V(48, 32)
                for n in range(32): b.append(vop("v_accvgpr_read_b32", R[n:n+1], A(32 * (t - 5) + n)))
            for n in range(0, 32, 2): b.append(vop("v_pk_mul_f32", R[n:n+2], R[n:n+2], rc, extra="op_sel_hi:[1,0]"))
            for m in range(4):
                r = R[8*m:8*m+8]
                for n in range(4): b.append(vop("v_cvt_pk_bf16_f32", r[n:n+1], r[2*n:2*n+1], r[2*n+1:2*n+2]))
                off = m * 7168 + t * 1024
                b.append(smov(sT[m % 2], off & ~4095))
                b.append(vst("buffer_store_dwordx4", r[0:4], vOD[0], SRD_O, sT[m % 2], off & 4095, flags, tag=('OST', 0)))
    def publish(b, flags, n):
        stamp(b, 6)
        b += [vop("v_mov_b32", tmp, 0), vop("v_mov_b32", tmp2, sNON), waitvm(('OST', 0)), bar(), scmp("s_cmp_lg_u32", sWAVE, 0), br("s_cbranch_scc1", f"L_noflag")]
        b = p.block(f"flag{n}")
        b += [setexec(1), vst("buffer_store_dword", tmp2, tmp, SRD_F, sSLOT, 0, flags), setexec(-1)]
        return b
    if CFG['local']:
        b += [scmp("s_cmp_eq_u32", sFAST, 0), br("s_cbranch_scc1", "L_stfast")]
        b = p.block("st_slow"); stores(b, CFG['o_flags']); b = publish(b, "sc1", 0); b.append(br("s_branch", "L_noflag"))
        b = p.block("st_fast"); b.append(label("L_stfast")); stores(b, ""); publish(b, CFG.get('flag_fast', ""), 1)
    else:
        stores(b, CFG['o_flags']); publish(b, "sc1", 1)
    b = p.block("handoff")
    b.append(label("L_noflag"))
    stamp(b, 7)
    t0, t1, t2, rho2, ct = sT
    b += [salu("s_and_b32", rho2, sHP, 1), salu("s_lshr_b32", ct, sHP, 1), vop("v_and_b32", i16, 15, lane), vop("v_lshrrev_b32", g, 4, lane)]
    b += [vop("v_lshlrev_b32", tmp, 11, g), vop("v_lshlrev_b32", tmp2, 1, g), vop("v_xor_b32", tmp2, tmp2, i16), vop("v_lshlrev_b32", tmp2, 4, tmp2),
          vop("v_xor_b32", V(31), 128, tmp2)]
    for pc in range(8):
        b += [vop("v_add_u32", vWD2[pc], tmp, tmp2 if pc % 2 == 0 else V(31)), vop("v_add_u32", vWD2[pc], pc * 8192 - (pc & 3) * 1024, vWD2[pc])]
    b += [salu("s_lshl_b32", t0, sWAVE, 21), salu("s_lshl_b32", t1, ct, 8), salu("s_add_u32", t0, t0, t1), salu("s_sub_u32", t2, 2097152, t1)]
    srd(b, SRD_W2, KP(4), t0, t2)
    b.append(smov(sW2, 0))
    for ks in range(CFG.get('w2pre', 2)):
        for c, ins in ld_w2(ks, ks): b.append(ins)
    b += [salu("s_lshl_b32", t0, sBLK, 3), salu("s_add_u32", t0, t0, sB),
          salu("s_lshl_b32", t2, t0, 1), salu("s_add_u32", t2, t2, rho2), salu("s_lshl_b32", t2, t2, 2), salu("s_add_u32", t2, t2, sWAVE), smul(t2, t2, 229376)]
    srd(b, SRD_O2, KP(12), t2, 229376)
    b += [smov(sO2, 0), salu("s_lshl_b32", t0, t0, 11), salu("s_lshl_b32", t1, sWAVE, 9), salu("s_add_u32", t0, t0, t1), salu("s_add_u32", sSLOT, t0, 4096)]
    b += [smul(t0, sB, 224), smul(t1, rho2, 112), salu("s_add_u32", t0, t0, t1), salu("s_lshl_b32", t0, t0, 12),
          salu("s_lshl_b32", t1, sBLK, 11), salu("s_add_u32", t0, t0, t1), salu("s_lshl_b32", t1, ct, 8), salu("s_add_u32", t0, t0, t1)]
    srd(b, SRD_C, KP(10), t0, 111 * 4096 + 256)
    b += [vop("v_and_b32", tmp, 1, g), vop("v_lshlrev_b32", tmp, 1, tmp), vop("v_lshrrev_b32", tmp2, 1, g), vop("v_or_b32", tmp, tmp, tmp2),
          vop("v_lshlrev_b32", tmp, 4, tmp), vop("v_lshl_add_u32", tmp, i16, 12, tmp), salu("s_lshl_b32", t0, sWAVE, 6), vop("v_add_u32", vC, t0, tmp)]
    b += [vop("v_bfe_u32", r_, lane, 2, 2), vop("v_and_b32", c_, 3, lane),
          vop("v_lshl_add_u32", tmp, g, 2, r_), vop("v_lshlrev_b32", tmp, 8, tmp), vop("v_lshl_add_u32", tmp, c_, 3, tmp), vop("v_add_u32", tmp, sMA, tmp),
          vop("v_and_b32", g, 1, g), vop("v_lshl_add_u32", g, g, 2, r_), salu("s_lshl_b32", t0, sWAVE, 1), vop("v_xor_b32", g, t0, g), vop("v_lshlrev_b32", g, 5, g)]
    for n in range(8): b += [vop("v_xor_b32", vWA2[n], n * 32, g), vop("v_add_u32", vWA2[n], tmp, vWA2[n])]
    for n in range(4): b += [salu("s_xor_b32", t0, sWAVE, n), smul(t0, t0, 40960), vop("v_add_u32", vR[n], t0, vOD[0])]
    b += [vop("v_lshlrev_b32", tmp, 7, c_), smov(sCNT, "0x200000")]
    for r in range(32, 256, 2): b.append(vop("v_mov_b64", V(r, 2), 0))
    b.append(waitvm(('W2', 0)))
    for n in range(8):
        for h in range(2): b.append(dsr("ds_read_b64_tr_b16", FA(n)[2*h:2*h+2], vWA2[n], h * 4096))
    b = p.block("poll")
    b += [label("L_poll"), vld("buffer_load_dword", tmp2, tmp, SRD_F, sSLOT, 0, "sc1"), waitall(), vop("v_cmp_ne_u32", 'vcc', sNON, tmp2),
          salu("s_sub_u32", sCNT, sCNT, 1), scmp("s_cmp_eq_u32", sCNT, 0), br("s_cbranch_scc1", "L_go"),
          Ins("s_cbranch_vccz L_go", 'br', r=[('vcc', 0)]), raw(f"s_sleep {CFG['sleep']}"), br("s_branch", "L_poll")]
    b = p.block("op_pro")
    b.append(label("L_go"))
    stamp(b, 8)
    seq = ld_o2(0, 0)
    for ks in range(1, 4):
        if ks >= CFG.get('w2pre', 2): seq += ld_w2(ks, ks)
        if ks < 3: seq += ld_o2(ks, ks)
    for c, ins in seq: b.append(ins)
    b.append(smov(sCNT, 7))

def op_step(b, s, srel, both=False):
    gaps = [[] for _ in range(56)]
    used = []
    w = waitvm(('W2', srel + 1))
    if both:
        w.need.append(('W2', srel + 2))
        for n in range(8):
            used.append(7 * n + 9 if n < 7 else 53)
            for h in range(2): gaps[used[-1]].append(dsr("ds_read_b64_tr_b16", FA31(n)[2*h:2*h+2], vWA2[n], ((s + 2) & 3) * 8192 + h * 4096))
    gaps[5].append(w)
    for n in range(8):
        for h in range(2): gaps[7 * n + 6].append(dsr("ds_read_b64_tr_b16", FA(n)[2*h:2*h+2], vWA2[n], ((s + 1) & 3) * 8192 + h * 4096))
    seq = []
    if s + 3 <= 31: seq += ld_o2(s + 3, srel + 3)
    if s + 4 <= 31:
        seq += ld_w2(s + 4, srel + 4)
        gaps[4].append(waitlgkm0())
    free = [g for g in range(7, CFG['op_hi']) if g % 7 != 6 and g not in used]
    place(gaps, seq, free, 5, 56)
    for j in range(56):
        n, qt = divmod(j, 7)
        b.append(mfma(ACC2(n, qt), FA(n), FB(s & 3, qt), ACC2(n, qt)))
        b += gaps[j]

def oproj(p):
    b = p.block("op_loop")
    b.append(label("L_op"))
    for s in range(4): op_step(b, s, s)
    b += [salu("s_sub_u32", sCNT, sCNT, 1), scmp("s_cmp_lg_u32", sCNT, 0), br("s_cbranch_scc1", "L_op")]
    b = p.block("op_tail")
    op_step(b, 28, 28); op_step(b, 29, 29, both=True)
    T = lambda m: ACC2(2 + m // 7, m % 7)
    gaps = [[] for _ in range(112)]
    gaps[4].append(waitlgkm0())
    sent, g = 0, 8
    while g < 112 and sent < 40:
        if 14 * (sent // 7) + 2 * (sent % 7) + 1 + 6 <= g:
            gaps[g].append(dsw("ds_write_b128", vR[0], T(sent), sent * 1024)); sent += 1; g += CFG.get('wsp', 3)
        else: g += 1
    for j in range(112):
        pos, r = divmod(j, 14); qt, k = divmod(r, 2); n = (2, 3, 4, 5, 6, 7, 0, 1)[pos]
        b.append(mfma(ACC2(n, qt), FA31(n) if k else FA(n), FB((30 + k) & 3, qt), ACC2(n, qt)))
        b += gaps[j]
    stamp(b, 9)
    own = [ACC2(m // 7, m % 7) for m in range(14)]
    for m in range(sent, 40): b.append(dsw("ds_write_b128", vR[0], T(m), m * 1024))
    b += [waitlgkm0(), bar()]
    def add(dst, src):
        for r in range(4): b.append(vop("v_add_f32", dst[r:r+1], dst[r:r+1], src[r:r+1]))
    for m in range(40): b.append(dsr("ds_read_b128", T(m), vR[1 + m // 14], m * 1024))
    for m in range(2): add(own[m], T(m))
    for m in range(2): b.append(dsw("ds_write_b128", vR[1], T(40 + m), m * 1024))
    for m in range(2, 40): add(own[m % 14], T(m))
    b += [waitlgkm0(), bar()]
    for m in range(2): b.append(dsr("ds_read_b128", T(40 + m), vR[2], m * 1024))
    out = [T(qt) for qt in range(7)]
    def fin(qt):
        a0, a1, o = own[qt], own[7 + qt], out[qt]
        return [vop("v_cvt_pk_bf16_f32", o[0:1], a0[0:1], a0[1:2]), vop("v_cvt_pk_bf16_f32", o[1:2], a0[2:3], a0[3:4]),
                vop("v_cvt_pk_bf16_f32", o[2:3], a1[0:1], a1[1:2]), vop("v_cvt_pk_bf16_f32", o[3:4], a1[2:3], a1[3:4])]
    def fin2(qt):
        o = out[qt]
        return [perm("v_permlane16_swap_b32", o[0:1], o[2:3]), perm("v_permlane16_swap_b32", o[1:2], o[3:4]),
                smov(sT[qt % 2], qt * 65536), vst("buffer_store_dwordx4", o, vC, SRD_C, sT[qt % 2], 0, CFG['out_flags'])]
    for qt in range(5): b += fin(qt)
    for qt in range(5): b += fin2(qt)
    for m in range(2): add(own[12 + m], T(40 + m))
    for qt in (5, 6): b += fin(qt)
    for qt in (5, 6): b += fin2(qt)
    stamp(b, 10)
    if CFG['stamps']:
        b.append(waitall())
        stamp(b, 11)
        b += [salu("s_add_u32", S(40), S(60), "0x4000000"), Ins("s_addc_u32 s41, s61, 0", 'salu', w=S(41), r=S(61)),
              smov(S(42), "0x200000"), smov(S(43), "0x20000"),
              salu("s_lshl_b32", sT[0], S(2), 2), salu("s_add_u32", sT[0], sT[0], sWAVE), salu("s_lshl_b32", sT[0], sT[0], 6)]
        if CFG['trace']:
            b += [vop("v_and_b32", V(2), 63, V(0)), vop("v_lshlrev_b32", V(2), 2, V(2)), salu("s_lshl_b32", sT[1], sT[0], 2), salu("s_add_u32", sT[1], sT[1], "0x100000"),
                  vop("v_accvgpr_read_b32", V(3), A(240)), vst("buffer_store_dword", V(3), V(2), S(40, 4), sT[1], 0)]
        if CFG.get('dbg') is not None:
            b += [salu("s_lshl_b32", sT[1], S(2), 2), salu("s_add_u32", sT[1], sT[1], sWAVE), scmp("s_cmp_lg_u32", sT[1], CFG['dbg'] * 4), br("s_cbranch_scc1", "L_end")]
            srd(b, S(44, 4), KP(11), 0, 256)
            for n in range(1, 12): b += [salu("s_sub_u32", sT[2], S(80 + n), S(80)), vop("v_mov_b32", V(7 + n), sT[2])]
            for n in range(3): b += [salu("s_sub_u32", sT[2], S(93 + n), S(92 + n)), vop("v_mov_b32", V(19 + n), sT[2])]
            b += [vop("v_mov_b32", V(22), 0), vop("v_mov_b32", V(2), 0), setexec(1)]
            for n in range(4): b.append(vst("buffer_store_dword" + ("x4" if n < 3 else "x3"), V(8 + 4 * n, 4 if n < 3 else 3), V(2), S(44, 4), 0, 4 + 16 * n))
            b.append(raw("s_endpgm"))
        for n in range(16): b += [vop("v_mov_b32", V(8 + n), S(80 + n))]
        b += [vop("v_mov_b32", V(2), 0), setexec(1)]
        for n in range(4): b.append(vst("buffer_store_dwordx4", V(8 + 4 * n, 4), V(2), S(40, 4), sT[0], 16 * n))
    b += [label("L_end"), raw("s_endpgm")]

def maxpass(p):
    b = p.block("max_pre")
    b.append(label("L_maxpass"))
    b += [smov(sPASS, 1), smov(sCNT, 32), smov(sKV, 0), bar()]
    for t in range(7): b.append(vop("v_mov_b32", vL[t], "0xff800000"))
    b = p.block("max_loop")
    b.append(label("L_maxl"))
    for pp in range(8):
        b += [salu("s_add_u32", M0, sMK, pp * 1024), dma(vKD[pp & 1], SRD_KV, sKV, 0, CFG['kv_flags']), salu("s_add_u32", sKV, sKV, sC1K)]
    b += [waitall(), bar()]
    for f in range(8): b.append(dsr("ds_read_b128", KF(f), vKA[f & 3], (f >> 2) * 4096))
    b += [waitlgkm0(), bar()]
    for t in range(7):
        s = SB(t & 1)
        for kt in range(2):
            for ds in range(4):
                d = s[4*kt:4*kt+4]
                b.append(mfma(d, KF(4 * kt + ds), QF(t, ds), 0 if ds == 0 else d))
        for n in range(0, 8, 2): b.append(vop("v_max3_f32", vL[t], vL[t], s[n:n+1], s[n+1:n+2]))
    b += [salu("s_sub_u32", sCNT, sCNT, 1), scmp("s_cmp_lg_u32", sCNT, 0), br("s_cbranch_scc1", "L_maxl")]
    b = p.block("max_post")
    lane_reduce(b, vL, [V(32 + t) for t in range(7)], "v_max_f32")
    for t in range(7):
        for r in NEGM(t): b.append(vop("v_sub_f32", [r], 0, vL[t]))
    b.append(smov(sKV, 0))
    for tile in range(4):
        for c, ins in kv_ops(tile): b.append(ins)
    for t in range(7): b.append(vop("v_mov_b32", vL[t], 0))
    if CFG['trace']: b.append(smov(sTRI, 32))
    b += [waitvm(('P', 7)), bar()]
    for f in range(8): b.append(dsr("ds_read_b128", KF(f), vKA[f & 3], (f >> 2) * 4096))
    b.append(smov(sCNT, 7))
    for G in range(-8, 0): b.append(at_mfma(G))
    b.append(br("s_branch", "L_at"))

def build(cfg=None):
    CFG.clear(); CFG.update(DEFAULT); CFG.update(cfg or {})
    p = Program()
    prologue(p); qproj(p); attention(p); check_store_handoff(p); oproj(p); maxpass(p)
    E = lambda *n: [(x, {}) for x in n]
    main = E("pro", "ep1", "pro2", "ep2", "pro3") + [("qp_loop", {'W': 4 * k, 'X': 2 * k}) for k in range(7)] + E("qp_tail", "tagspin", "tagspin", "qp_tail2", "pub", "qp_tail3")
    at = E("at_entry") + [("at_loop", {'P': CFG['ng'] * k, 'T': 32 * k}) for k in range(7)] + E("at_tail", "check")
    fb = E("max_pre", "max_loop", "max_loop", "max_post")
    st = E("store", "st_slow", "flag0") if CFG['local'] else E("store", "flag1")
    rest = E("handoff", "poll", "poll", "op_pro") + [("op_loop", {'W2': 4 * k, 'O2': 4 * k}) for k in range(7)] + E("op_tail")
    drop = lambda tr, *n: [x for x in tr if x[0] not in n]
    fast = lambda tr: [({'st_slow': 'st_fast', 'flag0': 'flag1'}.get(x[0], x[0]), x[1]) for x in tr]
    traces = []
    for body in (main + at + st + rest, main + at + fb + at + st + rest):
        for f in ((lambda t: t), fast) if CFG['local'] else ((lambda t: t),):
            for d in ((), ('ep1', 'ep2', 'pub', 'flag0', 'flag1'), ('tagspin',), ('tagspin', 'ep1', 'ep2'), ('tagspin', 'ep1', 'ep2', 'pub', 'flag0', 'flag1')):
                traces.append(drop(f(body), *d))
    for tr in traces: p.insert_waits(tr)
    n = 0
    for tr in traces: n += p.fix_hazards(tr, verbose=CFG.get('verbose'))
    return p, n
```
